```python
import torch

def _softmax(x, axis=-1):
    return torch.softmax(x, dim=axis)
def _gelu(x):
    return torch.nn.functional.gelu(x, approximate="tanh")
def _silu(x):
    return torch.nn.functional.silu(x)
def _sigmoid(x):
    return torch.sigmoid(x)
def _layernorm(x, axis=-1, eps=1e-5):
    m = x.mean(dim=axis, keepdim=True)
    v = x.var(dim=axis, keepdim=True, unbiased=False)
    return (x - m) / torch.sqrt(v + eps)
def _scatter_add(tgt, idx, src, axis=0):
    return tgt.clone().index_add_(axis, idx, src)
def _segment_sum(src, seg, n):
    out = torch.zeros((n,) + src.shape[1:], dtype=src.dtype)
    return out.index_add_(0, seg, src)
def _pad(x, pw):
    flat = tuple(v for pair in reversed(pw) for v in pair)
    return torch.nn.functional.pad(x, flat)

kernel_name = 'sequential_preLN__mha_block__glu_gated_reglu__prompt'

def setup_inputs():

    _w = (lambda a: (lambda t: t.to(torch.bfloat16) if t.is_floating_point() else t)(torch.as_tensor(a)))
    def _A_setup():
        B, S, D, H = 1, 2048, 640, 32
        return {
            "x": _w((lambda *s: torch.randn(*s, dtype=torch.bfloat16) * 0.05)(B, S, D)),
            "wqkv": _w((lambda *s: torch.randn(*s, dtype=torch.bfloat16) * 0.05)(D, 3 * D)),
            "wo": _w((lambda *s: torch.randn(*s, dtype=torch.bfloat16) * 0.05)(D, D)),
        }
    _A_in = _A_setup()

    def _B_setup():
        B, S, D, F = 1, 2048, 640, 1728
        return {
            "x": _w((lambda *s: torch.randn(*s, dtype=torch.bfloat16) * 0.05)(B, S, D)),
            "W_gate": _w((lambda *s: torch.randn(*s, dtype=torch.bfloat16) * 0.4)(D, F) * (2.0 / D) ** 0.5),
            "W_up": _w((lambda *s: torch.randn(*s, dtype=torch.bfloat16) * 0.4)(D, F) * (2.0 / D) ** 0.5),
            "W_down": _w((lambda *s: torch.randn(*s, dtype=torch.bfloat16) * 0.4)(F, D) * (1.0 / F) ** 0.5),
        }
    _B_in = _B_setup()

    return {
        "A_x": _A_in["x"],
        "A_wqkv": _A_in["wqkv"],
        "A_wo": _A_in["wo"],
        "B_x": _B_in["x"],
        "B_W_gate": _B_in["W_gate"],
        "B_W_up": _B_in["W_up"],
        "B_W_down": _B_in["W_down"],
    }

def reference(A_x, A_wqkv, A_wo, B_x, B_W_gate, B_W_up, B_W_down):
    def _A_ref(x, wqkv, wo):
        B, S, D = x.shape
        H = 32
        Dh = D // H
        qkv = (lambda x, *d: x.permute(*d))((x @ wqkv).reshape(B, S, 3, H, Dh), 2, 0, 3, 1, 4)
        q, k, v = qkv[0], qkv[1], qkv[2]
        scores = torch.einsum("bhqd,bhkd->bhqk", q, k) * (Dh ** -0.5)
        p = _softmax(scores, axis=-1)
        o = torch.einsum("bhqk,bhkd->bhqd", p, v)
        return (lambda x, *d: x.permute(*d))(o, 0, 2, 1, 3).reshape(B, S, D) @ wo

    def _B_ref(x, W_gate, W_up, W_down):
        gate = torch.einsum("bsd,df->bsf", x, W_gate)
        up = torch.einsum("bsd,df->bsf", x, W_up)
        gate = gate * (lambda x, dt: x.to(dt))(gate > 0, gate.dtype)
        h = gate * up
        return torch.einsum("bsf,fd->bsd", h, W_down)

    x = A_x
    h = x + _A_ref(_layernorm(x, axis=-1), A_wqkv, A_wo)
    h2 = h + _B_ref(_layernorm(h, axis=-1), B_W_gate, B_W_up, B_W_down)
    return h2
```

```python
import re
TRANS = ("v_exp_", "v_log_", "v_rcp_", "v_rsq_", "v_sqrt_", "v_sin_", "v_cos_")
RE_RNG = re.compile(r"^([vsa])\[(\d+):(\d+)\]$")
RE_ONE = re.compile(r"^([vsa])(\d+)$")

def regs_of(tok):
    tok = tok.strip().lstrip("-").strip("|")
    m = RE_RNG.match(tok)
    if m: return [(m.group(1), i) for i in range(int(m.group(2)), int(m.group(3)) + 1)]
    m = RE_ONE.match(tok)
    if m: return [(m.group(1), int(m.group(2)))]
    if tok == "vcc": return [("x", "vcc")]
    if tok in ("vcc_lo", "vcc_hi"): return [("x", "vcc")]
    if tok in ("exec", "exec_lo", "exec_hi"): return [("x", "exec")]
    if tok == "m0": return [("x", "m0")]
    return []

class I:
    __slots__ = ("text", "op", "kind", "defs", "uses", "A", "B", "C", "D", "passes", "pad", "label", "target", "states", "wide", "dpp", "trans", "lane", "perm", "ldsdma", "opsel")
    pass

def parse(text):
    it = I(); it.text = text; it.pad = 0; it.label = None; it.target = None; it.states = 1
    it.defs = set(); it.uses = set(); it.kind = "other"; it.wide = set(); it.dpp = False; it.trans = False
    it.lane = False; it.perm = False; it.ldsdma = False; it.opsel = False
    t = text.split(";")[0].strip()
    if not t: it.kind = "none"; it.states = 0; it.op = ""; return it
    if t.endswith(":"):
        it.kind = "label"; it.label = t[:-1]; it.states = 0; it.op = ""; return it
    if t.startswith("."):
        it.kind = "none"; it.states = 0; it.op = ""; return it
    sp = t.split(None, 1); op = sp[0]; it.op = op
    rest = sp[1] if len(sp) > 1 else ""
    parts = [p.strip() for p in rest.split(",")] if rest else []
    mods = ""
    if parts:
        last = parts[-1].split(None, 1)
        ops = []
        depth = 0; cur = ""
        for ch in rest:
            if ch == "[": depth += 1
            if ch == "]": depth -= 1
            if ch == "," and depth == 0: ops.append(cur.strip()); cur = ""
            else: cur += ch
        ops.append(cur.strip())
        l = ops[-1].split(None, 1)
        ops[-1] = l[0]
        mods = l[1] if len(l) > 1 else ""
    else:
        ops = []
    R = [regs_of(o) for o in ops]
    if op == "s_nop":
        it.kind = "nop"; it.states = int(ops[0]) + 1
    elif op.startswith("s_cbranch") or op == "s_branch":
        it.kind = "branch"; it.target = ops[0]
    elif op == "s_endpgm":
        it.kind = "end"
    elif op.startswith("v_mfma"):
        it.kind = "mfma"; it.D = R[0]; it.A = R[1]; it.B = R[2]; it.C = R[3]
        it.passes = 8 if "32x32" in op else 4
        it.defs = set(R[0]); it.uses = set(R[1] + R[2] + R[3])
    elif op.startswith("v_"):
        it.kind = "valu"
        it.trans = op.startswith(TRANS)
        it.dpp = ("row_" in mods or "quad_perm" in mods or "_dpp" in op or "wave_" in mods)
        it.lane = op.startswith("v_readlane") or op.startswith("v_readfirstlane")
        it.perm = op.startswith("v_permlane")
        it.opsel = ("dst_sel" in mods) or ("op_sel" in mods and not op.startswith("v_pk_"))
        nd = 1
        if "_co_" in op: nd = 2
        for r in R[:nd]: it.defs |= set(r)
        for r in R[nd:]: it.uses |= set(r)
        if it.perm: it.defs |= set(R[1]); it.uses |= set(R[0])
        if op.startswith(("v_fmac", "v_mac", "v_dot2c", "v_pk_fmac")) or it.dpp or "UNUSED_PRESERVE" in mods or op.startswith("v_writelane"): it.uses |= set(R[0])
        if op.startswith("v_cmpx"): it.defs.add(("x", "exec"))
        if op.startswith("v_cndmask") and len(ops) == 3: it.uses.add(("x", "vcc"))
    elif op.startswith("ds_"):
        it.kind = "ds"
        if op.startswith(("ds_read", "ds_bpermute", "ds_permute", "ds_swizzle")):
            it.defs = set(R[0])
            for r in R[1:]: it.uses |= set(r)
        else:
            for r in R: it.uses |= set(r)
    elif op.startswith(("buffer_", "global_")):
        it.kind = "vmem"
        lds = " lds" in (" " + mods)
        if "_load" in op and not lds:
            it.defs = set(R[0])
            for r in R[1:]: it.uses |= set(r)
        else:
            for r in R: it.uses |= set(r)
            if "_store" in op and ("x4" in op or "x3" in op): it.wide = set(R[0])
        if lds: it.ldsdma = True; it.uses.add(("x", "m0"))
    elif op.startswith("s_"):
        it.kind = "salu"
        if op.startswith(("s_cmp", "s_waitcnt", "s_barrier", "s_setprio", "s_sleep", "s_bitcmp")):
            for r in R: it.uses |= set(r)
        else:
            if R: it.defs = set(R[0])
            for r in R[1:]: it.uses |= set(r)
            if "saveexec" in op: it.defs.add(("x", "exec"))
    return it

def need(P, C):
    n = 0
    if P.kind == "valu":
        vd = {r for r in P.defs if r[0] in "va"}
        sd = {r for r in P.defs if r[0] == "s" or r == ("x", "vcc")}
        if C.kind == "mfma" and vd & C.uses: n = max(n, 2)
        if C.kind == "valu":
            if vd & C.uses:
                if C.lane: n = max(n, 1)
                if C.perm or C.dpp: n = max(n, 2)
                if P.trans and not C.trans: n = max(n, 1)
                if P.opsel: n = max(n, 1)
            if P.opsel and vd & C.defs: n = max(n, 1)
            if sd & C.uses: n = max(n, 4 if (C.op.startswith("v_readlane") or C.op.startswith("v_writelane")) else 2)
        if C.kind == "vmem" and sd & C.uses: n = max(n, 5)
        if ("x", "exec") in P.defs:
            if C.kind == "mfma": n = max(n, 4)
            if C.kind == "valu":
                if C.dpp: n = max(n, 5)
                if C.lane or C.perm: n = max(n, 4)
                if ("x", "exec") in C.uses: n = max(n, 2)
    elif P.kind == "mfma":
        D = set(P.D); big = {4: 8, 8: 12}[P.passes]
        if C.kind == "mfma":
            if D & set(C.A + C.B): n = max(n, big)
            if D & set(C.C):
                if not (C.C == P.D and C.passes == P.passes): n = max(n, {4: 6, 8: 10}[P.passes])
        elif C.kind in ("valu", "ds", "vmem"):
            if D & (C.uses | C.defs): n = max(n, big)
            if C.kind == "valu" and set(P.C) & C.defs: n = max(n, {4: 3, 8: 7}[P.passes])
    elif P.kind == "vmem" and P.wide:
        if P.wide & C.defs: n = max(n, 2 if C.kind in ("valu", "mfma") else 1)
    elif P.kind == "salu":
        if ("x", "m0") in P.defs and C.ldsdma: n = max(n, 1)
    return n

class Asm:
    def __init__(self):
        self.items = []
        self.nl = 0
    def __call__(self, text):
        for line in text.split("\n"):
            line = line.strip()
            if line: self.items.append(parse(line))
    def label(self, name): self(name + ":")
    def newlabel(self, base):
        self.nl += 1
        return f"{base}_{self.nl}"
    def fix(self, report=None):
        it = self.items
        labels = {x.label: i for i, x in enumerate(it) if x.kind == "label"}
        srcs = {}
        for i, x in enumerate(it):
            if x.kind == "branch": srcs.setdefault(labels[x.target], []).append(i)
        def preds(i):
            p = []
            if i > 0 and not (it[i-1].kind == "end" or it[i-1].op == "s_branch"): p.append(i - 1)
            p += srcs.get(i, [])
            return p
        changed = True; rounds = 0
        while changed:
            changed = False; rounds += 1
            for i, C in enumerate(it):
                if C.kind in ("none", "label", "nop", "branch", "end"): continue
                worst = 0
                stack = [(p, C.pad) for p in preds(i)]
                seen = {}
                while stack:
                    j, d = stack.pop()
                    if d >= 12: continue
                    if j in seen and seen[j] <= d: continue
                    seen[j] = d
                    P = it[j]
                    if P.kind in ("valu", "mfma", "vmem", "salu"):
                        k = need(P, C) - d
                        if k > worst: worst = k
                    nd = d + P.states + P.pad
                    for p in preds(j): stack.append((p, nd))
                if worst > 0:
                    C.pad += worst; changed = True
                    if report is not None: report.append((i, worst, C.text))
            assert rounds < 10
    def text(self):
        out = []
        for x in self.items:
            p = x.pad
            while p > 0:
                k = min(p, 16); out.append(f"    s_nop {k-1}"); p -= k
            out.append(x.text if x.kind in ("label",) or x.text.startswith(".") else "    " + x.text)
        return "\n".join(out) + "\n"
```

```python
import sys, struct
sys.path.insert(0, "dev")
from asmb import Asm

S, D, H, DH, F = 2048, 640, 32, 20, 1728
WS_Q, WS_KV, WS_O, WS_H, WS_ACT = 0x0, 0x300000, 0x800000, 0xB00000, 0xE00000
WS_ST, WS_CS, WS_WOP, WS_WDP = 0x1500000, 0x1540000, 0x1600000, 0x1700000
SZ_X = S * D * 2
ACT_KS = 56
CS_UP = 1792 * 4

def f32(x): return "0x%08x" % struct.unpack("<I", struct.pack("<f", x))[0]
def vr(b, n): return f"v[{b}:{b+n-1}]" if n > 1 else f"v{b}"

def srd(a, d, ptr, off, size):
    if off:
        a(f"s_add_u32 s{d}, s{ptr}, {hex(off)}")
        a(f"s_addc_u32 s{d+1}, s{ptr+1}, 0")
    else:
        a(f"s_mov_b32 s{d}, s{ptr}")
        a(f"s_mov_b32 s{d+1}, s{ptr+1}")
    a(f"s_mov_b32 s{d+2}, {hex(size)}")
    a(f"s_mov_b32 s{d+3}, 0x00020000")

PROF = False
WS_PROF = 0x3000000
def ts(a, slot, real=False):
    if PROF: a(f"{'s_memrealtime' if real else 's_memtime'} s[{64+2*slot}:{65+2*slot}]")
def ts_flush(a, kidx, n=12):
    if not PROF: return
    a("s_waitcnt vmcnt(0)")
    ts(a, n - 2); ts(a, n - 1, True)
    a("s_mov_b64 exec, 1")
    srd(a, 96, 8, WS_PROF, 0x1000000)
    a(f"s_add_u32 s100, s2, {kidx*256}")
    a("s_lshl_b32 s100, s100, 3")
    a("s_add_u32 s100, s100, s101")
    a("s_lshl_b32 s100, s100, 6")
    a("v_mov_b32 v1, s100")
    a("s_waitcnt lgkmcnt(0)")
    for i in range(n):
        a(f"v_mov_b32 v0, s{64+2*i}")
        a(f"buffer_store_dword v0, v1, s[96:99], 0 offen offset:{i*4}")
    a("s_waitcnt vmcnt(0)")
def ts_init(a):
    if not PROF: return
    ts(a, 0); ts(a, 9, True)
    for i in range(1, 9): a(f"s_mov_b32 s{64+2*i}, 0")

def bf16_round(a, v, tmp=None):
    a(f"v_cvt_pk_bf16_f32 v{v}, v{v}, v{v}")
    a(f"v_and_b32 v{v}, 0xffff0000, v{v}")

def ln_stats(a, s1, s2, t, n=640):
    a(f"v_mul_f32 v{s1}, {f32(1.0/n)}, v{s1}")
    a(f"v_mul_f32 v{s2}, {f32(1.0/n)}, v{s2}")
    a(f"v_fma_f32 v{s2}, -v{s1}, v{s1}, v{s2}")
    a(f"v_max_f32 v{s2}, 0, v{s2}")
    bf16_round(a, s2)
    a(f"v_add_f32 v{s2}, {f32(1e-5)}, v{s2}")
    bf16_round(a, s2)
    a(f"v_sqrt_f32 v{s2}, v{s2}")
    bf16_round(a, s2)
    a(f"v_rcp_f32 v{s2}, v{s2}")
    bf16_round(a, s1)
    a(f"v_sub_f32 v{s1}, 0, v{s1}")

def swap_sum(a, v, t, which):
    a(f"v_mov_b32 v{t}, v{v}")
    a(f"v_permlane{which}_swap_b32 v{v}, v{t}")
    a(f"v_add_f32 v{v}, v{v}, v{t}")

def k_qkv(a, name):
    LB = 65536
    LCS, LNM, LRS = 131072, 131072 + 512, 131072 + 1024
    ts_init(a)
    a(f"""
    s_cmp_ge_u32 s2, 256
    s_cbranch_scc1 {name}_end
    s_load_dwordx4 s[4:7], s[0:1], 0
    s_load_dwordx4 s[24:27], s[0:1], 32
    s_load_dwordx2 s[8:9], s[0:1], 72
    v_lshrrev_b32 v1, 6, v0
    v_and_b32 v0, 63, v0
    v_readfirstlane_b32 s3, v1
    v_readfirstlane_b32 s101, v1
    s_and_b32 s28, s2, 7
    s_lshr_b32 s29, s2, 3
    s_cmp_ge_u32 s29, 30
    s_cbranch_scc1 {name}_colsum
    s_lshr_b32 s30, s28, 2
    s_mul_i32 s30, s30, 30
    s_add_u32 s30, s30, s29          ; t
    s_lshr_b32 s31, s30, 2           ; cb
    s_and_b32 s30, s30, 3
    s_and_b32 s28, s28, 3
    s_lshl_b32 s28, s28, 2
    s_add_u32 s30, s30, s28          ; rb
    v_and_b32 v2, 31, v0             ; l&31
    v_lshrrev_b32 v3, 5, v0          ; hf
    v_bfe_u32 v4, v0, 1, 3           ; ((l&31)>>1)&7
    s_cmp_ge_u32 s3, 4
    s_cbranch_scc1 {name}_helper
    """)
    XA, WA, XF, WF, ACC, CSA, ONES, SO = 8, 12, 16, 32, 48, 112, 116, 120
    a("s_setprio 2")
    a("s_and_b32 s32, s3, 1")
    a("s_lshr_b32 s33, s3, 1")
    a("s_lshl_b32 s34, s32, 13")
    a("v_lshlrev_b32 v5, 7, v2")
    a("v_add_u32 v5, s34, v5")
    for ks in range(4):
        a(f"v_or_b32 v6, {2*ks}, v3")
        a("v_xor_b32 v6, v6, v4")
        a(f"v_lshl_add_u32 v{XA+ks}, v6, 4, v5")
    a("v_bfe_u32 v5, v0, 2, 2")
    a("v_lshl_add_u32 v6, v3, 3, v5")
    a("v_lshlrev_b32 v6, 8, v6")
    a("v_bfe_u32 v7, v0, 4, 1")
    a("v_lshl_add_u32 v6, v7, 5, v6")
    a("v_and_b32 v7, 3, v0")
    a("v_lshl_add_u32 v6, v7, 3, v6")
    a(f"v_add_u32 v6, {LB}, v6")
    a("s_lshl_b32 s35, s33, 1")
    a("s_add_u32 s35, s35, s32")
    for blk in range(2):
        a(f"s_xor_b32 s36, s35, {blk}")
        a("v_xor_b32 v7, s36, v5")
        a(f"v_lshl_add_u32 v{WA+blk}, v7, 6, v6")
    a("v_and_b32 v5, 15, v0")
    a("v_bfe_u32 v6, v0, 4, 1")
    a("v_cmp_eq_u32 vcc, v5, v6")
    a("v_mov_b32 v5, 0x3f803f80")
    a(f"v_cndmask_b32 v{ONES}, 0, v5, vcc")
    for i in range(1, 4): a(f"v_mov_b32 v{ONES+i}, v{ONES}")
    for i in range(68): a(f"v_mov_b32 v{ACC+i}, 0")
    a("s_waitcnt lgkmcnt(0)")
    a("s_cmp_ge_u32 s31, 10")
    a(f"s_cbranch_scc1 {name}_vsetup")
    a("s_cmp_ge_u32 s31, 5")
    a("s_cselect_b32 s37, 5, 0")
    a("s_sub_u32 s37, s31, s37")
    a("s_cmp_ge_u32 s31, 5")
    a(f"s_cselect_b32 s38, {hex(WS_KV)}, {hex(WS_Q)}")
    a("s_movk_i32 s39, 1280")
    a("s_cselect_b32 s39, 2560, s39")
    a(f"s_cselect_b32 s40, {f32(1.0)}, {f32(DH ** -0.5 * 1.4426950408889634)}")
    a("s_add_u32 s20, s8, s38")
    a("s_addc_u32 s21, s9, 0")
    a("s_lshl_b32 s22, s39, 11")
    a("s_mov_b32 s23, 0x00020000")
    a("s_lshl_b32 s41, s39, 6")
    a("s_lshl_b32 s42, s30, 2")
    a("s_lshl_b32 s43, s32, 1")
    a("s_add_u32 s42, s42, s43")
    a("s_mul_i32 s42, s42, s39")
    a("s_add_u32 s43, s42, s39")
    a("v_bfe_u32 v5, v2, 2, 1")
    a("v_bfe_u32 v6, v2, 3, 1")
    a("v_xor_b32 v5, v5, v6")
    a("v_mul_u32_u24 v5, 12, v5")
    a("v_xor_b32 v5, v5, v2")
    a("s_cmp_ge_u32 s31, 5")
    a("s_cselect_b64 vcc, -1, 0")
    a("v_cndmask_b32 v5, v2, v5, vcc")
    a("v_lshlrev_b32 v5, 4, v5")
    a("s_lshl_b32 s44, s37, 5")
    a("s_lshl_b32 s45, s33, 4")
    a("s_add_u32 s44, s44, s45")
    for fb in range(2):
        a(f"s_xor_b32 s45, s32, {fb}")
        a("s_lshl_b32 s45, s45, 3")
        a("s_add_u32 s45, s45, s44")
        a("v_add_u32 v6, s45, v3")
        for q in range(4):
            d = SO + fb * 4 + q
            a(f"v_add_u32 v7, {2*q}, v6")
            a("v_mul_u32_u24 v1, 205, v7")
            a("v_lshrrev_b32 v1, 10, v1")
            a("v_mul_u32_u24 v4, 5, v1")
            a("v_sub_u32 v7, v7, v4")
            a(f"v_mul_lo_u32 v{d}, v1, s41")
            a("v_lshrrev_b32 v1, 1, v7")
            a(f"v_lshl_add_u32 v{d}, v1, 9, v{d}")
            a("v_and_b32 v1, 1, v7")
            a(f"v_lshl_add_u32 v{d}, v1, 3, v{d}")
            a("v_lshrrev_b32 v1, 2, v7")
            a("v_lshrrev_b32 v1, v1, v5")
            a(f"v_add_u32 v{d}, v{d}, v1")

    def reads(n):
        c, ks = n >> 2, n & 3
        st = (c & 3) * 16384
        b = n & 1
        for blk in range(2):
            a(f"ds_read_b128 {vr(XF+b*8+blk*4,4)}, v{XA+ks} offset:{st+blk*4096}")
        for blk in range(2):
            a(f"ds_read_b64_tr_b16 {vr(WF+b*8+blk*4,2)}, v{WA+blk} offset:{st+ks*4096}")
            a(f"ds_read_b64_tr_b16 {vr(WF+b*8+blk*4+2,2)}, v{WA+blk} offset:{st+ks*4096+1024}")

    def mainloop(isv):
        ts(a, 1)
        a("s_barrier")
        ts(a, 2)
        reads(0)
        for n in range(40):
            b = n & 1
            if (n & 3) == 3:
                a("s_waitcnt lgkmcnt(0)")
                a("s_barrier")
                if n in (3, 15, 27, 39): ts(a, 3 + n // 12)
                if n < 39: reads(n + 1)
            else:
                reads(n + 1)
                a("s_waitcnt lgkmcnt(6)")
            for fb in range(2):
                for tb in range(2):
                    acc = vr(ACC + (fb * 2 + tb) * 16, 16)
                    x, w = vr(XF + b * 8 + tb * 4, 4), vr(WF + b * 8 + fb * 4, 4)
                    if isv: a(f"v_mfma_f32_32x32x16_bf16 {acc}, {x}, {w}, {acc}")
                    else:   a(f"v_mfma_f32_32x32x16_bf16 {acc}, {w}, {x}, {acc}")
            a(f"v_mfma_f32_16x16x32_bf16 {vr(CSA,4)}, {vr(ONES,4)}, {vr(WF+b*8,4)}, {vr(CSA,4)}")

    def cs_publish():
        a("s_lshl_b32 s46, s33, 1")
        a("s_add_u32 s46, s46, s32")
        a("s_lshl_b32 s46, s46, 7")
        a(f"s_add_u32 s46, s46, {LCS}")
        a("v_lshlrev_b32 v1, 2, v0")
        a("v_add_u32 v1, s46, v1")
        a("s_mov_b64 exec, 0xffff")
        a(f"ds_write2_b32 v1, v{CSA}, v{CSA+1} offset0:0 offset1:16")
        a("s_mov_b64 exec, -1")
        a("s_waitcnt lgkmcnt(0)")
        a("s_barrier")
        ts(a, 7)

    for isv in (0, 1):
        if isv:
            a.label(f"{name}_vsetup")
            srd(a, 20, 8, WS_KV, 32 * 163840)
            a("s_sub_u32 s37, s31, 10")
            a("s_lshl_b32 s42, s30, 2")
            a("s_lshl_b32 s43, s32, 1")
            a("s_add_u32 s42, s42, s43")
            a("s_mul_i32 s42, s42, 2560")
            a("s_add_u32 s43, s42, 2560")
            a("s_lshl_b32 s44, s37, 7")
            a("s_lshl_b32 s45, s33, 6")
            a("s_add_u32 s44, s44, s45")
            a("s_mov_b32 s41, 163840")
            for fb in range(2):
                d = SO + fb
                a(f"s_xor_b32 s45, s32, {fb}")
                a("s_lshl_b32 s45, s45, 5")
                a("s_add_u32 s45, s45, s44")
                a(f"v_add_u32 v7, s45, v2")
                a("v_mul_u32_u24 v1, 3277, v7")
                a("v_lshrrev_b32 v1, 16, v1")
                a("v_mul_u32_u24 v4, 20, v1")
                a("v_sub_u32 v7, v7, v4")
                a(f"v_mul_lo_u32 v{d}, v1, s41")
                a(f"v_lshl_add_u32 v{d}, v7, 4, v{d}")
                a(f"v_lshl_add_u32 v{d}, v3, 3, v{d}")
                a(f"v_add_u32 v{d}, 1280, v{d}")
        mainloop(isv)
        cs_publish()
        T = 16
        if not isv:
            a("v_lshlrev_b32 v1, 4, v3")
            a("v_add_u32 v1, s46, v1")
            a("v_xor_b32 v4, 128, v1")
            for fb in range(2):
                for q in range(4):
                    a(f"ds_read_b128 {vr(128+fb*16+q*4,4)}, v{4 if fb else 1} offset:{q*32}")
            a("s_lshl_b32 s46, s32, 8")
            a(f"s_add_u32 s46, s46, {LNM}")
            a("v_lshlrev_b32 v1, 2, v2")
            a("v_add_u32 v1, s46, v1")
            for tb in range(2):
                a(f"ds_read2_b32 {vr(16+tb*2,2)}, v1 offset0:{tb*32} offset1:{tb*32+128}")
            a("s_waitcnt lgkmcnt(0)")
            for tb in range(2): a(f"v_mul_f32 v{17+tb*2}, s40, v{17+tb*2}")
            k = 0
            for fb in range(2):
                for tb in range(2):
                    for q in range(4):
                        r = ACC + (fb * 2 + tb) * 16 + q * 4
                        c = 128 + fb * 16 + q * 4
                        mr = vr(16 + tb * 2, 2)
                        for h in (0, 2):
                            a(f"v_pk_fma_f32 {vr(r+h,2)}, {vr(c+h,2)}, {mr}, {vr(r+h,2)} op_sel_hi:[1,0,1]")
                        for h in (0, 2):
                            a(f"v_pk_mul_f32 {vr(r+h,2)}, {vr(r+h,2)}, {mr} op_sel:[0,1] op_sel_hi:[1,1]")
                        t = 20 + (k % 8) * 2; k += 1
                        a(f"v_cvt_pk_bf16_f32 v{t}, v{r}, v{r+1}")
                        a(f"v_cvt_pk_bf16_f32 v{t+1}, v{r+2}, v{r+3}")
                        a(f"buffer_store_dwordx2 {vr(t,2)}, v{SO+fb*4+q}, s[20:23], s{42+tb} offen")
        else:
            a("v_lshlrev_b32 v1, 2, v2")
            a("v_add_u32 v1, s46, v1")
            a("v_xor_b32 v4, 128, v1")
            for fb in range(2):
                a(f"ds_read_b32 v{16+fb*2}, v{4 if fb else 1}")
            a("s_lshl_b32 s46, s32, 8")
            a(f"s_add_u32 s46, s46, {LNM}")
            a("v_lshlrev_b32 v1, 4, v3")
            a("v_add_u32 v1, s46, v1")
            for tb in range(2):
                for q in range(4):
                    a(f"ds_read_b128 {vr(128+tb*16+q*4,4)}, v1 offset:{tb*128+q*32}")
                    a(f"ds_read_b128 {vr(160+tb*16+q*4,4)}, v1 offset:{512+tb*128+q*32}")
            a("s_waitcnt lgkmcnt(0)")
            k = 0
            for fb in range(2):
                for tb in range(2):
                    for q in range(4):
                        r = ACC + (fb * 2 + tb) * 16 + q * 4
                        m = 128 + tb * 16 + q * 4
                        cs = vr(16 + fb * 2, 2)
                        for h in (0, 2):
                            a(f"v_pk_fma_f32 {vr(r+h,2)}, {vr(m+h,2)}, {cs}, {vr(r+h,2)} op_sel_hi:[1,0,1]")
                        for h in (0, 2):
                            a(f"v_pk_mul_f32 {vr(r+h,2)}, {vr(r+h,2)}, {vr(m+32+h,2)}")
                        t = 20 + (k % 8) * 2; k += 1
                        a(f"v_cvt_pk_bf16_f32 v{t}, v{r}, v{r+1}")
                        a(f"v_cvt_pk_bf16_f32 v{t+1}, v{r+2}, v{r+3}")
                        a(f"buffer_store_dwordx2 {vr(t,2)}, v{SO+fb}, s[20:23], s{42+tb} offen offset:{(q>>1)*640+(q&1)*320}")
        ts(a, 8)
        ts_flush(a, 0)
        a("s_endpgm")

    a.label(f"{name}_helper")
    a("s_sub_u32 s3, s3, 4")
    a("s_and_b32 s32, s3, 1")
    a("s_lshl_b32 s32, s32, 2")
    a("v_lshrrev_b32 v5, 4, v0")
    a("v_add_u32 v6, s32, v5")
    a("v_and_b32 v7, 7, v0")
    a("v_xor_b32 v6, v6, v7")
    a("v_lshlrev_b32 v6, 4, v6")
    a("v_lshrrev_b32 v7, 3, v0")
    a("s_lshl_b32 s33, s3, 3")
    a("v_add_u32 v7, s33, v7")
    a("v_mul_u32_u24 v7, 1280, v7")
    a("v_add_u32 v8, v7, v6")
    a("s_lshl_b32 s33, s3, 2")
    a("v_add_u32 v7, s33, v5")
    a("v_mul_u32_u24 v7, 3840, v7")
    a("v_bfe_u32 v6, v0, 2, 2")
    a("v_xor_b32 v6, v6, v5")
    a("v_lshl_add_u32 v7, v6, 6, v7")
    a("v_and_b32 v6, 3, v0")
    a("v_lshl_add_u32 v9, v6, 4, v7")
    a("s_mul_i32 s34, s30, 163840")
    a("s_lshl_b32 s35, s31, 8")
    a("s_lshl_b32 s36, s3, 10")
    a("s_waitcnt lgkmcnt(0)")
    srd(a, 12, 4, 0, SZ_X)
    srd(a, 16, 6, 0, D * 1920 * 2)
    def issue(c):
        st = (c & 3) * 16384
        for j in range(4):
            a(f"s_add_u32 m0, s36, {st + j*4096}")
            a(f"s_add_u32 s37, s34, {c*128 + j*40960}")
            a("buffer_load_dwordx4 v8, s[12:15], s37 offen lds")
            a(f"s_add_u32 m0, s36, {LB + st + j*4096}")
            a(f"s_add_u32 s38, s35, {(c*64 + j*16)*3840}")
            a("buffer_load_dwordx4 v9, s[16:19], s38 offen lds")
    for c in range(4): issue(c)
    a("s_lshl_b32 s33, s3, 12")
    a("v_lshlrev_b32 v5, 7, v2")
    a("v_add_u32 v5, s33, v5")
    for ks in range(4):
        a(f"v_or_b32 v6, {2*ks}, v3")
        a("v_xor_b32 v6, v6, v4")
        a(f"v_lshl_add_u32 v{10+ks}, v6, 4, v5")
    for i in range(4): a(f"v_mov_b32 v{32+i}, 0")
    a("s_mov_b32 s39, 0xffff0000")
    a("s_waitcnt vmcnt(24)")
    a("s_barrier")
    for c in range(10):
        if c >= 1 and c + 3 <= 9: issue(c + 3)
        st = (c & 3) * 16384
        for ks in range(4):
            a(f"ds_read_b128 {vr(16+ks*4,4)}, v{10+ks} offset:{st}")
        for ks in range(4):
            a(f"s_waitcnt lgkmcnt({3-ks})")
            for i in range(4):
                r = 16 + ks * 4 + i
                t = 36 + (i & 1) * 2
                a(f"v_lshlrev_b32 v{t}, 16, v{r}")
                a(f"v_and_b32 v{t+1}, s39, v{r}")
                a(f"v_add_f32 v32, v32, v{t}")
                a(f"v_add_f32 v33, v33, v{t+1}")
                a(f"v_fma_f32 v34, v{t}, v{t}, v34")
                a(f"v_fma_f32 v35, v{t+1}, v{t+1}, v35")
        if c < 9:
            a(f"s_waitcnt vmcnt({8*(min(c+3,9)-(c+1))})")
        a("s_barrier")
    a("v_add_f32 v32, v32, v33")
    a("v_add_f32 v34, v34, v35")
    swap_sum(a, 32, 36, 32)
    swap_sum(a, 34, 36, 32)
    ln_stats(a, 32, 34, 36)
    a("s_lshl_b32 s33, s3, 7")
    a(f"s_add_u32 s33, s33, {LNM}")
    a("v_lshlrev_b32 v5, 2, v2")
    a("v_add_u32 v5, s33, v5")
    a("ds_write2_b32 v5, v32, v34 offset0:0 offset1:128")
    a("s_waitcnt lgkmcnt(0)")
    a("s_barrier")
    ts_flush(a, 0)
    a("s_endpgm")

    a.label(f"{name}_colsum")
    a("s_sub_u32 s29, s29, 30")
    a("s_lshl_b32 s29, s29, 3")
    a("s_add_u32 s29, s29, s28")
    a("s_lshl_b32 s29, s29, 3")
    a("s_add_u32 s29, s29, s3")
    a("s_cmp_ge_u32 s29, 108")
    a(f"s_cbranch_scc1 {name}_end")
    a("s_waitcnt lgkmcnt(0)")
    a("s_cmp_ge_u32 s29, 54")
    a("s_cselect_b32 s12, s26, s24")
    a("s_cselect_b32 s13, s27, s25")
    a("s_cselect_b32 s30, 54, 0")
    a(f"s_cselect_b32 s31, {CS_UP}, 0")
    a(f"s_mov_b32 s14, {D*F*2}")
    a("s_mov_b32 s15, 0x00020000")
    a("s_sub_u32 s29, s29, s30")
    srd(a, 16, 8, WS_CS, 2 * CS_UP)
    a("v_lshrrev_b32 v1, 2, v0")
    a("v_mul_u32_u24 v1, 3456, v1")
    a("v_and_b32 v2, 3, v0")
    a("v_lshl_add_u32 v1, v2, 4, v1")
    a("s_lshl_b32 s32, s29, 6")
    for i in range(40):
        a(f"s_add_u32 s33, s32, {i*16*3456}")
        a(f"buffer_load_dwordx4 {vr(16+i*4,4)}, v1, s[12:15], s33 offen")
    for i in range(8): a(f"v_mov_b32 v{4+i}, 0")
    a("s_mov_b32 s39, 0xffff0000")
    for i in range(40):
        a(f"s_waitcnt vmcnt({39-i})")
        for j in range(4):
            r = 16 + i * 4 + j
            a(f"v_lshlrev_b32 v{12+(j&1)*2}, 16, v{r}")
            a(f"v_and_b32 v{13+(j&1)*2}, s39, v{r}")
            a(f"v_add_f32 v{4+2*j}, v{4+2*j}, v{12+(j&1)*2}")
            a(f"v_add_f32 v{5+2*j}, v{5+2*j}, v{13+(j&1)*2}")
    for sh in (4, 8):
        for i in range(8):
            a(f"v_add_f32_dpp v{4+i}, v{4+i}, v{4+i} row_ror:{sh} row_mask:0xf bank_mask:0xf")
    for wh in (16, 32):
        for i in range(8): swap_sum(a, 4 + i, 16 + i, wh)
    a("s_lshl_b32 s32, s29, 7")
    a("s_add_u32 s32, s32, s31")
    a("v_lshlrev_b32 v1, 5, v2")
    a("s_mov_b64 exec, 0xf")
    a("buffer_store_dwordx4 v[4:7], v1, s[16:19], s32 offen")
    a("buffer_store_dwordx4 v[8:11], v1, s[16:19], s32 offen offset:16")
    ts_flush(a, 0)
    a.label(f"{name}_end")
    a("s_endpgm")
    return dict(grid=256, block=512, lds=131072 + 2048, vgpr=192)

def k_attn(a, name):
    AK, AB, AV, QA, QB, NEG, SS, PP, OO, KA, KB, VV, SO, MX = 2, 3, 4, 8, 12, 16, 32, 64, 72, 88, 96, 100, 116, 120
    ts_init(a)
    a(f"""
    s_cmp_ge_u32 s2, 256
    s_cbranch_scc1 {name}_end
    s_load_dwordx2 s[8:9], s[0:1], 72
    v_lshrrev_b32 v1, 6, v0
    v_and_b32 v0, 63, v0
    v_readfirstlane_b32 s3, v1
    v_readfirstlane_b32 s101, v1
    s_and_b32 s4, s2, 7
    s_lshl_b32 s4, s4, 2
    s_lshr_b32 s5, s2, 6
    s_add_u32 s4, s4, s5              ; head
    s_bfe_u32 s5, s2, 0x30003         ; qb
    s_mul_i32 s6, s4, 163840
    s_add_u32 s6, s6, {hex(WS_KV)}
    s_lshl_b32 s7, s4, 3
    s_add_u32 s7, s7, s5
    s_lshl_b32 s7, s7, 3
    s_add_u32 s7, s7, s3
    s_mul_i32 s7, s7, 1280
    v_lshlrev_b32 v{AK}, 4, v0
    v_and_b32 v5, 31, v0
    v_lshlrev_b32 v{AB}, 3, v5
    v_add_u32 v{AB}, 1024, v{AB}
    v_mov_b32 v{QB}, 0
    v_mov_b32 v{QB+1}, 0
    s_lshl_b32 m0, s3, 10
    s_waitcnt lgkmcnt(0)
    s_add_u32 s12, s8, s6
    s_addc_u32 s13, s9, 0
    s_mov_b32 s14, 163840
    s_mov_b32 s15, 0x00020000
    """)
    srd(a, 16, 8, WS_Q, SZ_X)
    a(f"buffer_load_dwordx4 {vr(QA,4)}, v{AK}, s[16:19], s7 offen")
    a("s_mov_b32 exec_hi, 0")
    a(f"buffer_load_dwordx2 {vr(QB,2)}, v{AB}, s[16:19], s7 offen")
    a("s_mov_b64 exec, -1")
    for j in range(20):
        a(f"buffer_load_dwordx4 v{AK}, s[12:15], m0 offen lds")
        if j < 19: a("s_add_u32 m0, m0, 8192")
    srd(a, 20, 8, WS_O, SZ_X)
    a("v_lshrrev_b32 v6, 5, v0")
    a("v_mul_u32_u24 v7, 320, v6")
    a(f"v_lshl_add_u32 v{AV}, v5, 4, v7")
    a(f"v_add_u32 v{AV}, 1280, v{AV}")
    a("v_cmp_eq_u32 vcc, 20, v5")
    a("v_mov_b32 v7, 0x3f803f80")
    a(f"v_cndmask_b32 v{VV}, 0, v7, vcc")
    for i in range(1, 16): a(f"v_mov_b32 v{VV+i}, v{VV}")
    a("s_mov_b32 s24, 0x000fffff")
    a("s_mov_b32 s25, 0x000fffff")
    a("s_lshl_b32 s10, s5, 4")
    a("s_lshl_b32 s11, s3, 1")
    a("s_add_u32 s10, s10, s11")
    a("v_bfe_u32 v7, v0, 4, 1")
    a("v_add_u32 v7, s10, v7")
    a("v_mul_u32_u24 v7, 20480, v7")
    a("v_and_b32 v1, 15, v0")
    a("v_lshl_add_u32 v7, v1, 4, v7")
    a("s_mul_i32 s10, s4, 5")
    a("v_add_u32 v6, s10, v6")
    for k in range(3):
        if k: a("v_add_u32 v6, 2, v6")
        a("v_lshrrev_b32 v1, 3, v6")
        a(f"v_lshl_add_u32 v{SO+k}, v1, 10, v7")
        a("v_and_b32 v1, 3, v6")
        a(f"v_lshl_add_u32 v{SO+k}, v1, 8, v{SO+k}")
        a("v_bfe_u32 v1, v6, 2, 1")
        a(f"v_lshl_add_u32 v{SO+k}, v1, 3, v{SO+k}")
    a("s_mov_b32 s26, 1")
    a("s_mov_b32 s27, 1")
    a("s_mov_b32 s28, 4")
    ts(a, 1)
    a("s_waitcnt vmcnt(18)")
    a("s_barrier")
    ts(a, 2)
    a.label(f"{name}_maxpass")
    a(f"v_mov_b32 v{MX}, 0xff800000")
    a(f"v_mov_b32 v{MX+1}, v{AK}")
    a(f"v_mov_b32 v{MX+2}, v{AB}")
    a("s_mov_b32 s29, s26")
    a.label(f"{name}_maxloop")
    a(f"ds_read_b64 {vr(KB,2)}, v{MX+2}")
    a(f"ds_read_b128 {vr(KA,4)}, v{MX+1}")
    a(f"v_add_u32 v{MX+1}, 2560, v{MX+1}")
    a(f"v_add_u32 v{MX+2}, 2560, v{MX+2}")
    a("s_waitcnt lgkmcnt(0)")
    a(f"v_mfma_f32_32x32x8bf16_1k {vr(SS,16)}, {vr(KB,2)}, {vr(QB,2)}, 0")
    a(f"v_mfma_f32_32x32x16_bf16 {vr(SS,16)}, {vr(KA,4)}, {vr(QA,4)}, {vr(SS,16)}")
    for i in range(8): a(f"v_max3_f32 v{MX}, v{SS+2*i}, v{SS+2*i+1}, v{MX}")
    a("s_sub_u32 s29, s29, 1")
    a("s_cmp_lg_u32 s29, 0")
    a(f"s_cbranch_scc1 {name}_maxloop")
    a(f"ds_read_b64 {vr(KB,2)}, v{AB}")
    a(f"ds_read_b128 {vr(KA,4)}, v{AK}")
    a(f"ds_read_b64 {vr(KB+2,2)}, v{AB} offset:2560")
    a(f"ds_read_b128 {vr(KA+4,4)}, v{AK} offset:2560")
    a("s_mov_b64 exec, s[24:25]")
    a(f"ds_read_b128 {vr(VV,4)}, v{AV}")
    a(f"ds_read_b128 {vr(VV+4,4)}, v{AV} offset:640")
    a("s_mov_b64 exec, -1")
    a(f"v_mov_b32 v{MX+1}, v{MX}")
    a(f"v_permlane32_swap_b32 v{MX}, v{MX+1}")
    a(f"v_max_f32 v{MX}, v{MX}, v{MX+1}")
    for i in range(16): a(f"v_sub_f32 v{NEG+i}, 0, v{MX}")
    for i in range(16): a(f"v_mov_b32 v{OO+i}, 0")
    for i in range(4): a(f"v_mov_b32 v{PP+4+i}, 0")
    a("s_waitcnt lgkmcnt(0)")
    a(f"v_mfma_f32_32x32x8bf16_1k {vr(SS,16)}, {vr(KB,2)}, {vr(QB,2)}, {vr(NEG,16)}")
    a(f"v_mfma_f32_32x32x16_bf16 {vr(SS,16)}, {vr(KA,4)}, {vr(QA,4)}, {vr(SS,16)}")
    a("s_mov_b32 s29, 0")
    a("s_nop 7")
    ts(a, 3)

    def step(u, last):
        c, n = u & 1, (u + 1) & 1
        s = SS + 16 * c
        o = u * 2560
        nxt = last is None or last >= 1
        nx2 = last is None or last >= 2
        ex = lambda i: a(f"v_exp_f32 v{s+i}, v{s+i}")
        cv = lambda i: a(f"v_cvt_pk_bf16_f32 v{PP+i}, v{s+2*i}, v{s+2*i+1}")
        a("s_waitcnt lgkmcnt(0)")
        if nxt: a(f"v_mfma_f32_32x32x8bf16_1k {vr(SS+16*n,16)}, {vr(KB+2*n,2)}, {vr(QB,2)}, {vr(NEG,16)}")
        if nx2:
            a(f"ds_read_b64 {vr(KB+2*c,2)}, v{AB} offset:{o+5120}")
            a(f"ds_read_b128 {vr(KA+4*c,4)}, v{AK} offset:{o+5120}")
        ex(0); ex(1); ex(2)
        a(f"v_mfma_f32_32x32x16_bf16 {vr(OO,16)}, {vr(VV+8*n+4,4)}, {vr(PP+4,4)}, {vr(OO,16)}")
        if nxt:
            a("s_mov_b64 exec, s[24:25]")
            a(f"ds_read_b128 {vr(VV+8*n,4)}, v{AV} offset:{o+2560}")
            a(f"ds_read_b128 {vr(VV+8*n+4,4)}, v{AV} offset:{o+2560+640}")
            a("s_mov_b64 exec, -1")
        ex(3); ex(4); ex(5); ex(6)
        if nxt: a(f"v_mfma_f32_32x32x16_bf16 {vr(SS+16*n,16)}, {vr(KA+4*n,4)}, {vr(QA,4)}, {vr(SS+16*n,16)}")
        ex(7); ex(8)
        cv(0); cv(1); cv(2); cv(3)
        ex(9); ex(10)
        a(f"v_mfma_f32_32x32x16_bf16 {vr(OO,16)}, {vr(VV+8*c,4)}, {vr(PP,4)}, {vr(OO,16)}")
        for i in range(11, 16): ex(i)
        cv(4); cv(5); cv(6); cv(7)

    a.label(f"{name}_loop")
    for u in range(4): step(u, None)
    a(f"v_add_u32 v{AK}, 10240, v{AK}")
    a(f"v_add_u32 v{AB}, 10240, v{AB}")
    a(f"v_add_u32 v{AV}, 10240, v{AV}")
    a("s_add_u32 s29, s29, 1")
    a("s_cmp_eq_u32 s29, s27")
    a(f"s_cbranch_scc1 {name}_barB")
    a("s_cmp_eq_u32 s29, s28")
    a(f"s_cbranch_scc1 {name}_barC")
    a("s_cmp_lt_u32 s29, 15")
    a(f"s_cbranch_scc1 {name}_loop")
    for u in range(4): step(u, 3 - u)
    a(f"v_mfma_f32_32x32x16_bf16 {vr(OO,16)}, {vr(VV+12,4)}, {vr(PP+4,4)}, {vr(OO,16)}")
    a(f"v_mov_b32 v{MX}, v{OO+8}")
    a(f"v_mov_b32 v{MX+1}, v{OO+8}")
    a(f"v_permlane32_swap_b32 v{MX}, v{MX+1}")
    a(f"v_cmp_gt_f32 vcc, {f32(2.0**30)}, v{MX+1}")
    a("s_cmp_eq_u64 vcc, -1")
    a(f"s_cbranch_scc1 {name}_done")
    a("s_cmp_eq_u32 s26, 64")
    a(f"s_cbranch_scc1 {name}_done")
    a("s_mov_b32 s26, 64")
    a("s_mov_b32 s27, -1")
    a("s_mov_b32 s28, -1")
    a(f"v_subrev_u32 v{AK}, {15*10240}, v{AK}")
    a(f"v_subrev_u32 v{AB}, {15*10240}, v{AB}")
    a(f"v_subrev_u32 v{AV}, {15*10240}, v{AV}")
    a(f"s_branch {name}_maxpass")
    a.label(f"{name}_barB")
    ts(a, 4)
    a("s_waitcnt vmcnt(14)")
    a("s_barrier")
    ts(a, 5)
    a(f"s_branch {name}_loop")
    a.label(f"{name}_barC")
    ts(a, 6)
    a("s_waitcnt vmcnt(0)")
    a("s_barrier")
    ts(a, 7)
    a(f"s_branch {name}_loop")
    a.label(f"{name}_done")
    ts(a, 8)
    a(f"v_rcp_f32 v{MX}, v{MX+1}")
    for k in range(3):
        for i in range(4): a(f"v_mul_f32 v{OO+4*k+i}, v{OO+4*k+i}, v{MX}")
        a(f"v_cvt_pk_bf16_f32 v{PP+2*k}, v{OO+4*k}, v{OO+4*k+1}")
        a(f"v_cvt_pk_bf16_f32 v{PP+2*k+1}, v{OO+4*k+2}, v{OO+4*k+3}")
        if k == 2: a("s_mov_b32 exec_hi, 0")
        a(f"buffer_store_dwordx2 {vr(PP+2*k,2)}, v{SO+k}, s[20:23], 0 offen")
    ts_flush(a, 1)
    a.label(f"{name}_end")
    a("s_endpgm")
    return dict(grid=256, block=512, lds=163840, vgpr=128)

def k_g24(a, name, which):
    g4 = which == 4
    NKS = 54 if g4 else 20
    AKS = ACT_KS if g4 else 20
    NG = (NKS + 3) // 4
    RING = 5; DEPTH = 3
    NA = 24 if g4 else 20
    WB, WF, ACC, RES, AF = 4, 8, 48, 68, 80
    kidx = 4 if g4 else 2
    ts_init(a)
    a(f"""
    s_cmp_ge_u32 s2, 256
    s_cbranch_scc1 {name}_end
    s_load_dwordx2 s[4:5], s[0:1], {48 if g4 else 16}
    s_load_dwordx2 s[6:7], s[0:1], {56 if g4 else 0}
    s_load_dwordx2 s[8:9], s[0:1], 72
    v_lshrrev_b32 v1, 6, v0
    v_and_b32 v0, 63, v0
    v_readfirstlane_b32 s3, v1
    v_readfirstlane_b32 s101, v1
    s_and_b32 s28, s2, 7
    s_lshl_b32 s28, s28, 2
    s_bfe_u32 s29, s2, 0x20003
    s_add_u32 s28, s28, s29
    s_lshr_b32 s29, s2, 5             ; n tile
    s_cmp_ge_u32 s3, 4
    s_cbranch_scc1 {name}_helper
    s_setprio 2
    v_lshlrev_b32 v2, 4, v0
    s_lshl_b32 s30, s28, 2
    s_add_u32 s30, s30, s3
    s_mul_i32 s31, s30, {AKS*1024}
    s_waitcnt lgkmcnt(0)
    """)
    srd(a, 12, 8, WS_ACT if g4 else WS_O, 128 * AKS * 1024)
    nload = [0]
    def aload(s):
        if s & 3 == 0: a(f"s_add_u32 s32, s31, {s*1024}")
        a(f"buffer_load_dwordx4 {vr(AF+(s%NA)*4,4)}, v2, s[12:15], s32 offen offset:{(s&3)*1024}")
    for s_ in range(4): aload(s_)
    a("v_and_b32 v1, 15, v0")
    a("v_lshrrev_b32 v3, 4, v0")
    a("v_mul_u32_u24 v78, 1280, v1")
    a("v_lshl_add_u32 v78, v3, 3, v78")
    a("s_mul_i32 s33, s30, 20480")
    a("s_mul_i32 s34, s29, 160")
    a("s_add_u32 s33, s33, s34")
    a("v_lshlrev_b32 v79, 4, v1")
    a("v_lshrrev_b32 v1, 1, v3")
    a("v_lshl_add_u32 v79, v1, 9, v79")
    a("v_and_b32 v1, 1, v3")
    a("v_lshl_add_u32 v79, v1, 3, v79")
    a("s_lshr_b32 s34, s30, 1")
    a("s_mul_i32 s34, s34, 40")
    a("s_mul_i32 s35, s29, 5")
    a("s_add_u32 s34, s34, s35")
    a("s_lshl_b32 s34, s34, 10")
    a("s_and_b32 s35, s30, 1")
    a("s_lshl_b32 s35, s35, 8")
    a("s_add_u32 s34, s34, s35")
    a("s_add_u32 s35, s34, 4096")
    srd(a, 16, 6, 0, SZ_X)
    srd(a, 20, 8, WS_H, SZ_X)
    for b in range(5):
        if g4: a(f"buffer_load_dwordx2 {vr(RES+2*b,2)}, v79, s[20:23], s{35 if b == 4 else 34} offen offset:{(b&3)*1024}")
        else:  a(f"buffer_load_dwordx2 {vr(RES+2*b,2)}, v78, s[16:19], s33 offen offset:{b*32}")
    for s_ in range(4, NA): aload(s_)
    a("v_lshrrev_b32 v1, 2, v0")
    a(f"v_mul_u32_u24 v{WB}, 160, v1")
    a("v_and_b32 v1, 3, v0")
    a(f"v_lshl_add_u32 v{WB}, v1, 3, v{WB}")
    a(f"v_add_u32 v{WB+1}, 61440, v{WB}")
    a(f"v_add_u32 v{WB+2}, 122880, v{WB}")
    for i in range(20): a(f"v_mov_b32 v{ACC+i}, 0")
    def wread(s, b, h):
        pos = s % (RING * 4)
        a(f"ds_read_b64_tr_b16 {vr(WF+(s&1)*20+b*4+2*h,2)}, v{WB+pos//12} offset:{(pos%12)*5120+b*32+h*2560}")
    ts(a, 1)
    a("s_barrier")
    ts(a, 2)
    for b in range(5): wread(0, b, 0); wread(0, b, 1)
    issued = NA
    for s_ in range(NKS):
        last_in_group = (s_ & 3) == 3 or s_ == NKS - 1
        vm = issued - 1 - s_ + (5 if s_ < 4 else 0)
        a(f"s_waitcnt vmcnt({vm}) lgkmcnt({0 if last_in_group else 8})")
        if last_in_group:
            a("s_barrier")
            if PROF and s_ in ((3, 7, 11, 15, 19) if not g4 else (3, 15, 27, 39, 53)): ts(a, 3 + (s_ // (12 if g4 else 4)))
        for b in range(5):
            if b and not last_in_group: a(f"s_waitcnt lgkmcnt(8)")
            a(f"v_mfma_f32_16x16x32_bf16 {vr(ACC+4*b,4)}, {vr(WF+(s_&1)*20+b*4,4)}, {vr(AF+(s_%NA)*4,4)}, {vr(ACC+4*b,4)}")
            if s_ + 1 < NKS: wread(s_ + 1, b, 0); wread(s_ + 1, b, 1)
        if s_ >= 1 and issued < NKS:
            aload(issued); issued += 1
    ts(a, 8)
    a("s_mov_b32 s39, 0xffff0000")
    if not g4:
        for i in range(4): a(f"v_mov_b32 v{8+i}, 0")
    for b in range(5):
        r, x, t = ACC + 4 * b, RES + 2 * b, 12 + (b & 1) * 4
        for h in range(2):
            a(f"v_lshlrev_b32 v{t+2*h}, 16, v{x+h}")
            a(f"v_and_b32 v{t+2*h+1}, s39, v{x+h}")
        for h in range(2):
            a(f"v_pk_add_f32 {vr(r+2*h,2)}, {vr(r+2*h,2)}, {vr(t+2*h,2)}")
        for h in range(2):
            a(f"v_cvt_pk_bf16_f32 v{x+h}, v{r+2*h}, v{r+2*h+1}")
        if g4:
            a(f"buffer_store_dwordx2 {vr(x,2)}, v78, s[16:19], s33 offen offset:{b*32}")
        else:
            a(f"buffer_store_dwordx2 {vr(x,2)}, v79, s[20:23], s{35 if b == 4 else 34} offen offset:{(b&3)*1024}")
            for h in range(2):
                a(f"v_lshlrev_b32 v{t+2*h}, 16, v{x+h}")
                a(f"v_and_b32 v{t+2*h+1}, s39, v{x+h}")
            for h in range(2):
                a(f"v_pk_add_f32 v[8:9], v[8:9], {vr(t+2*h,2)}")
                a(f"v_pk_fma_f32 v[10:11], {vr(t+2*h,2)}, {vr(t+2*h,2)}, v[10:11]")
    if not g4:
        a("v_add_f32 v8, v8, v9")
        a("v_add_f32 v9, v10, v11")
        for wh in (16, 32):
            a("v_mov_b32 v10, v8")
            a("v_mov_b32 v11, v9")
            a(f"v_permlane{wh}_swap_b32 v8, v10")
            a(f"v_permlane{wh}_swap_b32 v9, v11")
            a("v_pk_add_f32 v[8:9], v[8:9], v[10:11]")
        srd(a, 24, 8, WS_ST, 8 * S * 8)
        a("s_lshl_b32 s36, s29, 14")
        a("s_lshl_b32 s37, s30, 7")
        a("s_add_u32 s36, s36, s37")
        a("v_lshlrev_b32 v1, 3, v0")
        a("s_mov_b64 exec, 0xffff")
        a("buffer_store_dwordx2 v[8:9], v1, s[24:27], s36 offen")
    ts_flush(a, kidx)
    a("s_endpgm")
    a.label(f"{name}_helper")
    a("s_sub_u32 s3, s3, 4")
    for p_ in range(5):
        a(f"v_add_u32 v2, {p_*64}, v0")
        a("v_mul_u32_u24 v3, 6554, v2")
        a("v_lshrrev_b32 v3, 16, v3")
        a("v_mul_u32_u24 v4, 1120, v3")
        a(f"v_lshl_add_u32 v{8+p_}, v2, 4, v4")
    a("s_mul_i32 s30, s3, 40960")
    a("s_mul_i32 s31, s29, 160")
    a("s_add_u32 s30, s30, s31")
    a("s_mul_i32 s31, s3, 5120")
    a("s_waitcnt lgkmcnt(0)")
    srd(a, 12, 4, 0, NKS * 32 * 1280)
    def gissue(g):
        a(f"s_add_u32 s32, s30, {g*4*40960}")
        for p_ in range(5):
            a(f"s_add_u32 m0, s31, {(g%RING)*20480 + p_*1024}")
            a(f"buffer_load_dwordx4 v{8+p_}, s[12:15], s32 offen lds")
    gissue(0); gissue(1)
    a("s_waitcnt vmcnt(5)")
    a("s_barrier")
    nxt = 2
    for g in range(NG):
        lim = min(NG, g + RING)
        while nxt < lim and nxt <= g + DEPTH:
            gissue(nxt); nxt += 1
        if g + 1 < NG: a(f"s_waitcnt vmcnt({min(63, 5*(nxt-1-(g+1)))})")
        a("s_barrier")
    ts_flush(a, kidx)
    a.label(f"{name}_end")
    a("s_endpgm")
    return dict(grid=256, block=512, lds=RING * 20480, vgpr=AF + NA * 4)

def k_g3(a, name):
    STG = 28672 + 256
    UPO = 14336 + 128
    RING, DEPTH, NA = 5, 3, 16
    LCS = RING * STG
    WB, WF, ACC, AF = 4, 8, 64, 176
    ts_init(a)
    a(f"""
    s_cmp_ge_u32 s2, 256
    s_cbranch_scc1 {name}_end
    s_load_dwordx4 s[4:7], s[0:1], 32
    s_load_dwordx2 s[8:9], s[0:1], 72
    v_lshrrev_b32 v1, 6, v0
    v_and_b32 v0, 63, v0
    v_readfirstlane_b32 s3, v1
    v_readfirstlane_b32 s101, v1
    s_and_b32 s28, s2, 3
    s_lshl_b32 s28, s28, 2
    s_bfe_u32 s29, s2, 0x20003
    s_add_u32 s28, s28, s29
    s_bfe_u32 s29, s2, 0x10002
    s_lshl_b32 s29, s29, 3
    s_lshr_b32 s30, s2, 5
    s_add_u32 s29, s29, s30
    s_cmp_ge_u32 s3, 4
    s_cbranch_scc1 {name}_helper
    s_setprio 2
    v_lshlrev_b32 v2, 4, v0
    s_lshl_b32 s30, s28, 2
    s_add_u32 s30, s30, s3
    s_mul_i32 s31, s30, 40960
    s_waitcnt lgkmcnt(0)
    """)
    srd(a, 12, 8, WS_H, SZ_X)
    def aload(s):
        if s & 3 == 0: a(f"s_add_u32 s32, s31, {s*1024}")
        a(f"buffer_load_dwordx4 {vr(AF+(s%NA)*4,4)}, v2, s[12:15], s32 offen offset:{(s&3)*1024}")
    for s_ in range(4): aload(s_)
    srd(a, 16, 8, WS_ST, 8 * S * 8)
    a("v_and_b32 v1, 31, v0")
    a("v_lshrrev_b32 v3, 5, v0")
    a("v_lshlrev_b32 v240, 3, v1")
    a("v_lshl_add_u32 v240, v3, 16, v240")
    a("s_lshl_b32 s33, s30, 8")
    for i in range(4):
        a(f"buffer_load_dwordx2 {vr(242+2*i,2)}, v240, s[16:19], s33 offen")
        if i < 3: a("s_add_u32 s33, s33, 16384")
    for s_ in range(4, NA): aload(s_)
    a("v_bfe_u32 v240, v0, 2, 2")
    a("v_lshl_add_u32 v240, v3, 3, v240")
    a(f"v_mul_u32_u24 v{WB}, 224, v240")
    a("v_bfe_u32 v240, v0, 4, 1")
    a(f"v_mul_u32_u24 v240, {UPO}, v240")
    a(f"v_add_u32 v{WB}, v{WB}, v240")
    a("v_and_b32 v240, 3, v0")
    a(f"v_lshl_add_u32 v{WB}, v240, 3, v{WB}")
    a(f"v_add_u32 v{WB+1}, {2*STG}, v{WB}")
    a(f"v_add_u32 v{WB+2}, {4*STG}, v{WB}")
    for i in range(112): a(f"v_mov_b32 v{ACC+i}, 0")
    srd(a, 20, 8, WS_ACT, 128 * ACT_KS * 1024)
    a("v_bfe_u32 v240, v0, 4, 1")
    a(f"v_mul_u32_u24 v250, {ACT_KS*1024}, v240")
    a("v_and_b32 v240, 15, v0")
    a("v_lshl_add_u32 v250, v240, 4, v250")
    a("v_lshl_add_u32 v250, v3, 8, v250")
    a(f"s_mul_i32 s34, s30, {2*ACT_KS*1024}")
    a("s_mul_i32 s35, s29, 7")
    a("s_lshr_b32 s35, s35, 1")
    a("s_lshl_b32 s35, s35, 10")
    a("s_add_u32 s34, s34, s35")
    def wread(s, b, h):
        st = (s >> 2) % RING
        a(f"ds_read_b64_tr_b16 {vr(WF+(s&1)*28+b*4+2*h,2)}, v{WB+st//2} offset:{(st&1)*STG+(s&3)*3584+b*32+h*896}")
    ts(a, 1)
    a("s_barrier")
    ts(a, 2)
    for b in range(7): wread(0, b, 0); wread(0, b, 1)
    issued = NA
    for s_ in range(40):
        lig = (s_ & 3) == 3
        vm = issued - 1 - s_ + (4 if s_ < 4 else 0)
        a(f"s_waitcnt vmcnt({vm}) lgkmcnt(12)")
        for b in range(7):
            if lig and b == 3:
                a("s_waitcnt lgkmcnt(0)")
                a("s_barrier")
                if PROF and s_ in (3, 11, 19, 27, 39): ts(a, 3 + min(4, s_ // 8))
            elif b and not (lig and b > 3):
                a(f"s_waitcnt lgkmcnt({12 - 2*b if lig else 12})")
            a(f"v_mfma_f32_32x32x16_bf16 {vr(ACC+16*b,16)}, {vr(WF+(s_&1)*28+b*4,4)}, {vr(AF+(s_%NA)*4,4)}, {vr(ACC+16*b,16)}")
            if s_ + 1 < 40:
                if not lig: wread(s_ + 1, b, 0); wread(s_ + 1, b, 1)
                elif b >= 3:
                    for bb in {3: (0, 1), 4: (2, 3), 5: (4, 5), 6: (6,)}[b]: wread(s_ + 1, bb, 0); wread(s_ + 1, bb, 1)
            if b == 1 and s_ >= 1 and issued < 40:
                aload(issued); issued += 1
        if s_ == 5:
            for i in (244, 246, 248):
                a(f"v_add_f32 v242, v242, v{i}")
                a(f"v_add_f32 v243, v243, v{i+1}")
            swap_sum(a, 242, 244, 32)
            swap_sum(a, 243, 244, 32)
            ln_stats(a, 242, 243, 244)
            a("v_mul_f32 v243, v243, v243")
    ts(a, 8)
    a("v_lshlrev_b32 v1, 4, v3")
    a(f"v_add_u32 v1, {LCS}, v1")
    def csread(b):
        d = 8 + (b % 3) * 16
        for u in range(2):
            for q in range(2):
                a(f"ds_read_b128 {vr(d+u*8+q*4,4)}, v1 offset:{u*448+b*64+q*32}")
    def blk(b):
        d = 8 + (b % 3) * 16
        r = ACC + 16 * b
        for i in range(0, 16, 2):
            a(f"v_pk_fma_f32 {vr(r+i,2)}, {vr(d+i,2)}, v[242:243], {vr(r+i,2)} op_sel_hi:[1,0,1]")
        for i in range(8): a(f"v_max_f32 v{r+i}, 0, v{r+i}")
        for i in range(0, 8, 2):
            a(f"v_pk_mul_f32 {vr(r+8+i,2)}, {vr(r+8+i,2)}, v[242:243] op_sel:[0,1] op_sel_hi:[1,1]")
        for i in range(0, 8, 2):
            a(f"v_pk_mul_f32 {vr(r+i,2)}, {vr(r+i,2)}, {vr(r+8+i,2)}")
    def body(odd):
        csread(0); csread(1)
        for b in range(7):
            if b + 2 < 7: csread(b + 2)
            a(f"s_waitcnt lgkmcnt({4*min(2, 6-b)})")
            blk(b)
            r = ACC + 16 * b
            B = b + odd
            o = 176 + (B >> 1) * 8
            for q in range(2):
                for i in range(2):
                    a(f"v_cvt_pk_bf16_f32 v{o+q*4+(B&1)*2+i}, v{r+q*4+2*i}, v{r+q*4+2*i+1}")
            for q in range(2):
                off = (B >> 1) * 1024 + q * 512
                if B & 1 and b > 0:
                    a(f"buffer_store_dwordx4 {vr(o+q*4,4)}, v250, s[20:23], s34 offen offset:{off}")
                elif B & 1:
                    a(f"buffer_store_dwordx2 {vr(o+q*4+2,2)}, v250, s[20:23], s34 offen offset:{off+8}")
                elif b == 6:
                    a(f"buffer_store_dwordx2 {vr(o+q*4,2)}, v250, s[20:23], s34 offen offset:{off}")
    a("s_bitcmp1_b32 s29, 0")
    a(f"s_cbranch_scc1 {name}_odd")
    body(0)
    ts_flush(a, 3)
    a("s_endpgm")
    a.label(f"{name}_odd")
    body(1)
    ts_flush(a, 3)
    a("s_endpgm")
    a.label(f"{name}_helper")
    a("s_sub_u32 s3, s3, 4")
    for p_ in range(7):
        a(f"v_add_u32 v2, {p_*64}, v0")
        a("v_mul_u32_u24 v3, 4682, v2")
        a("v_lshrrev_b32 v3, 16, v3")
        a("v_mul_u32_u24 v4, 3232, v3")
        a(f"v_lshl_add_u32 v{8+p_}, v2, 4, v4")
    a("s_and_b32 s32, s3, 1")
    a(f"s_mul_i32 s30, s32, {32*3456}")
    a("s_mul_i32 s31, s29, 224")
    a("s_add_u32 s30, s30, s31")
    a("s_mul_i32 s31, s32, 7168")
    a("s_cmp_ge_u32 s3, 2")
    a(f"s_cselect_b32 s33, {UPO}, 0")
    a("s_add_u32 s31, s31, s33")
    a("s_waitcnt lgkmcnt(0)")
    a("s_cmp_ge_u32 s3, 2")
    a("s_cselect_b32 s12, s6, s4")
    a("s_cselect_b32 s13, s7, s5")
    a(f"s_mov_b32 s14, {D*F*2}")
    a("s_mov_b32 s15, 0x00020000")
    def gissue(g):
        a(f"s_add_u32 s32, s30, {g*64*3456}")
        for p_ in range(7):
            a(f"s_add_u32 m0, s31, {(g%RING)*STG + p_*1024}")
            a(f"buffer_load_dwordx4 v{8+p_}, s[12:15], s32 offen lds")
    gissue(0)
    srd(a, 16, 8, WS_CS, 2 * CS_UP)
    a("s_mul_i32 s34, s29, 448")
    a("s_and_b32 s35, s3, 1")
    a("s_mul_i32 s35, s35, 224")
    a("s_add_u32 s34, s34, s35")
    a("s_cmp_ge_u32 s3, 2")
    a(f"s_cselect_b32 s36, {CS_UP}, 0")
    a("s_add_u32 s34, s34, s36")
    a("v_lshlrev_b32 v2, 2, v0")
    a("buffer_load_dword v16, v2, s[16:19], s34 offen")
    gissue(1)
    a("s_mul_i32 s35, s3, 224")
    a(f"s_add_u32 s35, s35, {LCS}")
    a("v_add_u32 v2, s35, v2")
    a("s_waitcnt vmcnt(7)")
    a("s_mov_b32 exec_hi, 0xffffff")
    a("ds_write_b32 v2, v16")
    a("s_mov_b32 exec_hi, -1")
    a("s_waitcnt lgkmcnt(0)")
    a("s_barrier")
    nxt = 2
    for g in range(10):
        lim = min(10, g + RING)
        while nxt < lim and nxt <= g + DEPTH:
            gissue(nxt); nxt += 1
        if g + 1 < 10: a(f"s_waitcnt vmcnt({7*(nxt-1-(g+1))})")
        a("s_barrier")
    ts_flush(a, 3)
    a.label(f"{name}_end")
    a("s_endpgm")
    return dict(grid=256, block=512, lds=LCS + 1024, vgpr=256)

KERNELS = [("k_qkv_kernel", k_qkv), ("k_attn_kernel", k_attn), ("k_g2_kernel", lambda a, n: k_g24(a, n, 2)),
           ("k_g3_kernel", k_g3), ("k_g4_kernel", lambda a, n: k_g24(a, n, 4))]

HEADER = open("sequential_preLN__mha_block__glu_gated_reglu__prompt.s.ref").read().split("; Override")[0]

def build(kernels=None, report=False):
    kernels = kernels or KERNELS
    launch, body, desc = "", "", '.section .rodata,"a"\n'
    for name, fn in kernels:
        a = Asm()
        cfg = fn(a, name)
        rep = []
        a.fix(rep)
        if report:
            print(name, "instrs", len(a.items), "nops inserted", len(rep), sum(r[1] for r in rep))
        launch += f"; @launch kernel={name} grid=({cfg['grid']},1,1) block=({cfg['block']},1,1) lds={cfg['lds']}\n"
        body += f".globl {name}\n.p2align 8\n.type {name},@function\n{name}:\n" + a.text()
        v = (cfg["vgpr"] + 7) // 8 * 8
        desc += f""".p2align 6
.amdhsa_kernel {name}
  .amdhsa_next_free_vgpr {v}
  .amdhsa_next_free_sgpr 102
  .amdhsa_accum_offset {v}
  .amdhsa_group_segment_fixed_size 0
  .amdhsa_kernarg_size 80
  .amdhsa_user_sgpr_count 2
  .amdhsa_user_sgpr_kernarg_segment_ptr 1
  .amdhsa_system_sgpr_workgroup_id_x 1
.end_amdhsa_kernel
"""
    return HEADER + launch + '.amdgcn_target "amdgcn-amd-amdhsa--gfx950"\n.text\n' + body + desc

if __name__ == "__main__":
    out = sys.argv[1] if len(sys.argv) > 1 else "sequential_preLN__mha_block__glu_gated_reglu__prompt.s"
    if len(sys.argv) > 2 and sys.argv[2] == "prof": PROF = True
    open(out, "w").write(build(report=True))
```

```python
import sys, struct
sys.path.insert(0, "dev")
from asmb import Asm

S, D, H, DH, F = 2048, 640, 32, 20, 1728
WS_Q, WS_KV, WS_O, WS_H, WS_ACT = 0x0, 0x300000, 0x800000, 0xB00000, 0xE00000
WS_ST, WS_CS, WS_WOP, WS_WDP = 0x1500000, 0x1540000, 0x1600000, 0x1700000
SZ_X = S * D * 2
ACT_KS = 56
CS_UP = 1792 * 4

def f32(x): return "0x%08x" % struct.unpack("<I", struct.pack("<f", x))[0]
def vr(b, n): return f"v[{b}:{b+n-1}]" if n > 1 else f"v{b}"

def srd(a, d, ptr, off, size):
    if off:
        a(f"s_add_u32 s{d}, s{ptr}, {hex(off)}")
        a(f"s_addc_u32 s{d+1}, s{ptr+1}, 0")
    else:
        a(f"s_mov_b32 s{d}, s{ptr}")
        a(f"s_mov_b32 s{d+1}, s{ptr+1}")
    a(f"s_mov_b32 s{d+2}, {hex(size)}")
    a(f"s_mov_b32 s{d+3}, 0x00020000")

PROF = False
WS_PROF = 0x3000000
def ts(a, slot, real=False):
    if PROF: a(f"{'s_memrealtime' if real else 's_memtime'} s[{64+2*slot}:{65+2*slot}]")
def ts_flush(a, kidx, n=12):
    if DBG: dbg_stamp(a, kidx)
    if not PROF: return
    a("s_waitcnt vmcnt(0)")
    ts(a, n - 2); ts(a, n - 1, True)
    a("s_mov_b64 exec, 1")
    srd(a, 96, 8, WS_PROF, 0x1000000)
    a(f"s_add_u32 s100, s2, {kidx*256}")
    a("s_lshl_b32 s100, s100, 3")
    a("s_add_u32 s100, s100, s101")
    a("s_lshl_b32 s100, s100, 6")
    a("v_mov_b32 v1, s100")
    a("s_waitcnt lgkmcnt(0)")
    for i in range(n):
        a(f"v_mov_b32 v0, s{64+2*i}")
        a(f"buffer_store_dword v0, v1, s[96:99], 0 offen offset:{i*4}")
    a("s_waitcnt vmcnt(0)")
DBG = False
def dbg_stamp(a, kidx):
    lab = a.newlabel(f"dbgskip{kidx}")
    a("s_waitcnt vmcnt(0)")
    a("s_or_b32 s100, s2, s101")
    a("s_cmp_lg_u32 s100, 0")
    a(f"s_cbranch_scc1 {lab}")
    a("s_load_dwordx2 s[96:97], s[0:1], 64")
    a("s_memrealtime s[66:67]")
    a("s_waitcnt lgkmcnt(0)")
    a(f"s_add_u32 s96, s96, {(4-kidx)*512}")
    a("s_addc_u32 s97, s97, 0")
    a("s_mov_b32 s98, 64")
    a("s_mov_b32 s99, 0x00020000")
    a("s_mov_b64 exec, 1")
    a("v_mov_b32 v0, s64")
    a("v_mov_b32 v1, s66")
    a(f"v_mov_b32 v2, {kidx*8}")
    a("buffer_store_dwordx2 v[0:1], v2, s[96:99], 0 offen")
    a("s_waitcnt vmcnt(0)")
    a.label(lab)
def ts_init(a):
    if DBG: a("s_memrealtime s[64:65]")
    if not PROF: return
    ts(a, 0); ts(a, 9, True)
    for i in range(1, 9): a(f"s_mov_b32 s{64+2*i}, 0")

def bf16_round(a, v, tmp=None):
    a(f"v_cvt_pk_bf16_f32 v{v}, v{v}, v{v}")
    a(f"v_and_b32 v{v}, 0xffff0000, v{v}")

def ln_stats(a, s1, s2, t, n=640):
    a(f"v_mul_f32 v{s1}, {f32(1.0/n)}, v{s1}")
    a(f"v_mul_f32 v{s2}, {f32(1.0/n)}, v{s2}")
    a(f"v_fma_f32 v{s2}, -v{s1}, v{s1}, v{s2}")
    a(f"v_max_f32 v{s2}, 0, v{s2}")
    bf16_round(a, s2)
    a(f"v_add_f32 v{s2}, {f32(1e-5)}, v{s2}")
    bf16_round(a, s2)
    a(f"v_sqrt_f32 v{s2}, v{s2}")
    bf16_round(a, s2)
    a(f"v_rcp_f32 v{s2}, v{s2}")
    bf16_round(a, s1)
    a(f"v_sub_f32 v{s1}, 0, v{s1}")

def swap_sum(a, v, t, which):
    a(f"v_mov_b32 v{t}, v{v}")
    a(f"v_permlane{which}_swap_b32 v{v}, v{t}")
    a(f"v_add_f32 v{v}, v{v}, v{t}")

def k_qkv(a, name):
    LB = 65536
    LCS, LNM, LRS = 131072, 131072 + 512, 131072 + 1024
    ts_init(a)
    a(f"""
    s_cmp_ge_u32 s2, 256
    s_cbranch_scc1 {name}_end
    s_load_dwordx4 s[4:7], s[0:1], 0
    s_load_dwordx4 s[24:27], s[0:1], 32
    s_load_dwordx2 s[8:9], s[0:1], 72
    v_lshrrev_b32 v1, 6, v0
    v_and_b32 v0, 63, v0
    v_readfirstlane_b32 s3, v1
    v_readfirstlane_b32 s101, v1
    s_and_b32 s28, s2, 7
    s_lshr_b32 s29, s2, 3
    s_cmp_ge_u32 s29, 30
    s_cbranch_scc1 {name}_colsum
    s_lshr_b32 s30, s28, 2
    s_mul_i32 s30, s30, 30
    s_add_u32 s30, s30, s29          ; t
    s_lshr_b32 s31, s30, 2           ; cb
    s_and_b32 s30, s30, 3
    s_and_b32 s28, s28, 3
    s_lshl_b32 s28, s28, 2
    s_add_u32 s30, s30, s28          ; rb
    v_and_b32 v2, 31, v0             ; l&31
    v_lshrrev_b32 v3, 5, v0          ; hf
    v_bfe_u32 v4, v0, 1, 3           ; ((l&31)>>1)&7
    s_cmp_ge_u32 s3, 4
    s_cbranch_scc1 {name}_helper
    """)
    XA, WA, XF, WF, ACC, CSA, ONES, SO = 8, 12, 16, 32, 48, 112, 116, 120
    a("s_setprio 2")
    a("s_and_b32 s32, s3, 1")
    a("s_lshr_b32 s33, s3, 1")
    a("s_lshl_b32 s34, s32, 13")
    a("v_lshlrev_b32 v5, 7, v2")
    a("v_add_u32 v5, s34, v5")
    for ks in range(4):
        a(f"v_or_b32 v6, {2*ks}, v3")
        a("v_xor_b32 v6, v6, v4")
        a(f"v_lshl_add_u32 v{XA+ks}, v6, 4, v5")
    a("v_bfe_u32 v5, v0, 2, 2")
    a("v_lshl_add_u32 v6, v3, 3, v5")
    a("v_lshlrev_b32 v6, 8, v6")
    a("v_bfe_u32 v7, v0, 4, 1")
    a("v_lshl_add_u32 v6, v7, 5, v6")
    a("v_and_b32 v7, 3, v0")
    a("v_lshl_add_u32 v6, v7, 3, v6")
    a(f"v_add_u32 v6, {LB}, v6")
    a("s_lshl_b32 s35, s33, 1")
    a("s_add_u32 s35, s35, s32")
    for blk in range(2):
        a(f"s_xor_b32 s36, s35, {blk}")
        a("v_xor_b32 v7, s36, v5")
        a(f"v_lshl_add_u32 v{WA+blk}, v7, 6, v6")
    a("v_and_b32 v5, 15, v0")
    a("v_bfe_u32 v6, v0, 4, 1")
    a("v_cmp_eq_u32 vcc, v5, v6")
    a("v_mov_b32 v5, 0x3f803f80")
    a(f"v_cndmask_b32 v{ONES}, 0, v5, vcc")
    for i in range(1, 4): a(f"v_mov_b32 v{ONES+i}, v{ONES}")
    for i in range(68): a(f"v_mov_b32 v{ACC+i}, 0")
    a("s_waitcnt lgkmcnt(0)")
    a("s_cmp_ge_u32 s31, 10")
    a(f"s_cbranch_scc1 {name}_vsetup")
    a("s_cmp_ge_u32 s31, 5")
    a("s_cselect_b32 s37, 5, 0")
    a("s_sub_u32 s37, s31, s37")
    a("s_cmp_ge_u32 s31, 5")
    a(f"s_cselect_b32 s38, {hex(WS_KV)}, {hex(WS_Q)}")
    a("s_movk_i32 s39, 1280")
    a("s_cselect_b32 s39, 2560, s39")
    a(f"s_cselect_b32 s40, {f32(1.0)}, {f32(DH ** -0.5 * 1.4426950408889634)}")
    a("s_add_u32 s20, s8, s38")
    a("s_addc_u32 s21, s9, 0")
    a("s_lshl_b32 s22, s39, 11")
    a("s_mov_b32 s23, 0x00020000")
    a("s_lshl_b32 s41, s39, 6")
    a("s_lshl_b32 s42, s30, 2")
    a("s_lshl_b32 s43, s32, 1")
    a("s_add_u32 s42, s42, s43")
    a("s_mul_i32 s42, s42, s39")
    a("s_add_u32 s43, s42, s39")
    a("v_bfe_u32 v5, v2, 2, 1")
    a("v_bfe_u32 v6, v2, 3, 1")
    a("v_xor_b32 v5, v5, v6")
    a("v_mul_u32_u24 v5, 12, v5")
    a("v_xor_b32 v5, v5, v2")
    a("s_cmp_ge_u32 s31, 5")
    a("s_cselect_b64 vcc, -1, 0")
    a("v_cndmask_b32 v5, v2, v5, vcc")
    a("v_lshlrev_b32 v5, 4, v5")
    a("s_lshl_b32 s44, s37, 5")
    a("s_lshl_b32 s45, s33, 4")
    a("s_add_u32 s44, s44, s45")
    for fb in range(2):
        a(f"s_xor_b32 s45, s32, {fb}")
        a("s_lshl_b32 s45, s45, 3")
        a("s_add_u32 s45, s45, s44")
        a("v_add_u32 v6, s45, v3")
        for q in range(4):
            d = SO + fb * 4 + q
            a(f"v_add_u32 v7, {2*q}, v6")
            a("v_mul_u32_u24 v1, 205, v7")
            a("v_lshrrev_b32 v1, 10, v1")
            a("v_mul_u32_u24 v4, 5, v1")
            a("v_sub_u32 v7, v7, v4")
            a(f"v_mul_lo_u32 v{d}, v1, s41")
            a("v_lshrrev_b32 v1, 1, v7")
            a(f"v_lshl_add_u32 v{d}, v1, 9, v{d}")
            a("v_and_b32 v1, 1, v7")
            a(f"v_lshl_add_u32 v{d}, v1, 3, v{d}")
            a("v_lshrrev_b32 v1, 2, v7")
            a("v_lshrrev_b32 v1, v1, v5")
            a(f"v_add_u32 v{d}, v{d}, v1")

    def reads(n):
        c, ks = n >> 2, n & 3
        st = (c & 3) * 16384
        b = n & 1
        for blk in range(2):
            a(f"ds_read_b128 {vr(XF+b*8+blk*4,4)}, v{XA+ks} offset:{st+blk*4096}")
        for blk in range(2):
            a(f"ds_read_b64_tr_b16 {vr(WF+b*8+blk*4,2)}, v{WA+blk} offset:{st+ks*4096}")
            a(f"ds_read_b64_tr_b16 {vr(WF+b*8+blk*4+2,2)}, v{WA+blk} offset:{st+ks*4096+1024}")

    def mainloop(isv):
        ts(a, 1)
        a("s_barrier")
        ts(a, 2)
        reads(0)
        for n in range(40):
            b = n & 1
            if (n & 3) == 3:
                a("s_waitcnt lgkmcnt(0)")
                a("s_barrier")
                if n in (3, 15, 27, 39): ts(a, 3 + n // 12)
                if n < 39: reads(n + 1)
            else:
                reads(n + 1)
                a("s_waitcnt lgkmcnt(6)")
            for fb in range(2):
                for tb in range(2):
                    acc = vr(ACC + (fb * 2 + tb) * 16, 16)
                    x, w = vr(XF + b * 8 + tb * 4, 4), vr(WF + b * 8 + fb * 4, 4)
                    if isv: a(f"v_mfma_f32_32x32x16_bf16 {acc}, {x}, {w}, {acc}")
                    else:   a(f"v_mfma_f32_32x32x16_bf16 {acc}, {w}, {x}, {acc}")
            a(f"v_mfma_f32_16x16x32_bf16 {vr(CSA,4)}, {vr(ONES,4)}, {vr(WF+b*8,4)}, {vr(CSA,4)}")

    def cs_publish():
        a("s_lshl_b32 s46, s33, 1")
        a("s_add_u32 s46, s46, s32")
        a("s_lshl_b32 s46, s46, 7")
        a(f"s_add_u32 s46, s46, {LCS}")
        a("v_lshlrev_b32 v1, 2, v0")
        a("v_add_u32 v1, s46, v1")
        a("s_mov_b64 exec, 0xffff")
        a(f"ds_write2_b32 v1, v{CSA}, v{CSA+1} offset0:0 offset1:16")
        a("s_mov_b64 exec, -1")
        a("s_waitcnt lgkmcnt(0)")
        a("s_barrier")
        ts(a, 7)

    for isv in (0, 1):
        if isv:
            a.label(f"{name}_vsetup")
            srd(a, 20, 8, WS_KV, 32 * 163840)
            a("s_sub_u32 s37, s31, 10")
            a("s_lshl_b32 s42, s30, 2")
            a("s_lshl_b32 s43, s32, 1")
            a("s_add_u32 s42, s42, s43")
            a("s_mul_i32 s42, s42, 2560")
            a("s_add_u32 s43, s42, 2560")
            a("s_lshl_b32 s44, s37, 7")
            a("s_lshl_b32 s45, s33, 6")
            a("s_add_u32 s44, s44, s45")
            a("s_mov_b32 s41, 163840")
            for fb in range(2):
                d = SO + fb
                a(f"s_xor_b32 s45, s32, {fb}")
                a("s_lshl_b32 s45, s45, 5")
                a("s_add_u32 s45, s45, s44")
                a(f"v_add_u32 v7, s45, v2")
                a("v_mul_u32_u24 v1, 3277, v7")
                a("v_lshrrev_b32 v1, 16, v1")
                a("v_mul_u32_u24 v4, 20, v1")
                a("v_sub_u32 v7, v7, v4")
                a(f"v_mul_lo_u32 v{d}, v1, s41")
                a(f"v_lshl_add_u32 v{d}, v7, 4, v{d}")
                a(f"v_lshl_add_u32 v{d}, v3, 3, v{d}")
                a(f"v_add_u32 v{d}, 1280, v{d}")
        mainloop(isv)
        cs_publish()
        T = 16
        if not isv:
            a("v_lshlrev_b32 v1, 4, v3")
            a("v_add_u32 v1, s46, v1")
            a("v_xor_b32 v4, 128, v1")
            for fb in range(2):
                for q in range(4):
                    a(f"ds_read_b128 {vr(128+fb*16+q*4,4)}, v{4 if fb else 1} offset:{q*32}")
            a("s_lshl_b32 s46, s32, 8")
            a(f"s_add_u32 s46, s46, {LNM}")
            a("v_lshlrev_b32 v1, 2, v2")
            a("v_add_u32 v1, s46, v1")
            for tb in range(2):
                a(f"ds_read2_b32 {vr(16+tb*2,2)}, v1 offset0:{tb*32} offset1:{tb*32+128}")
            a("s_waitcnt lgkmcnt(0)")
            for tb in range(2): a(f"v_mul_f32 v{17+tb*2}, s40, v{17+tb*2}")
            k = 0
            for fb in range(2):
                for tb in range(2):
                    for q in range(4):
                        r = ACC + (fb * 2 + tb) * 16 + q * 4
                        c = 128 + fb * 16 + q * 4
                        mr = vr(16 + tb * 2, 2)
                        for h in (0, 2):
                            a(f"v_pk_fma_f32 {vr(r+h,2)}, {vr(c+h,2)}, {mr}, {vr(r+h,2)} op_sel_hi:[1,0,1]")
                        for h in (0, 2):
                            a(f"v_pk_mul_f32 {vr(r+h,2)}, {vr(r+h,2)}, {mr} op_sel:[0,1] op_sel_hi:[1,1]")
                        t = 20 + (k % 8) * 2; k += 1
                        a(f"v_cvt_pk_bf16_f32 v{t}, v{r}, v{r+1}")
                        a(f"v_cvt_pk_bf16_f32 v{t+1}, v{r+2}, v{r+3}")
                        a(f"buffer_store_dwordx2 {vr(t,2)}, v{SO+fb*4+q}, s[20:23], s{42+tb} offen")
        else:
            a("v_lshlrev_b32 v1, 2, v2")
            a("v_add_u32 v1, s46, v1")
            a("v_xor_b32 v4, 128, v1")
            for fb in range(2):
                a(f"ds_read_b32 v{16+fb*2}, v{4 if fb else 1}")
            a("s_lshl_b32 s46, s32, 8")
            a(f"s_add_u32 s46, s46, {LNM}")
            a("v_lshlrev_b32 v1, 4, v3")
            a("v_add_u32 v1, s46, v1")
            for tb in range(2):
                for q in range(4):
                    a(f"ds_read_b128 {vr(128+tb*16+q*4,4)}, v1 offset:{tb*128+q*32}")
                    a(f"ds_read_b128 {vr(160+tb*16+q*4,4)}, v1 offset:{512+tb*128+q*32}")
            a("s_waitcnt lgkmcnt(0)")
            k = 0
            for fb in range(2):
                for tb in range(2):
                    for q in range(4):
                        r = ACC + (fb * 2 + tb) * 16 + q * 4
                        m = 128 + tb * 16 + q * 4
                        cs = vr(16 + fb * 2, 2)
                        for h in (0, 2):
                            a(f"v_pk_fma_f32 {vr(r+h,2)}, {vr(m+h,2)}, {cs}, {vr(r+h,2)} op_sel_hi:[1,0,1]")
                        for h in (0, 2):
                            a(f"v_pk_mul_f32 {vr(r+h,2)}, {vr(r+h,2)}, {vr(m+32+h,2)}")
                        t = 20 + (k % 8) * 2; k += 1
                        a(f"v_cvt_pk_bf16_f32 v{t}, v{r}, v{r+1}")
                        a(f"v_cvt_pk_bf16_f32 v{t+1}, v{r+2}, v{r+3}")
                        a(f"buffer_store_dwordx2 {vr(t,2)}, v{SO+fb}, s[20:23], s{42+tb} offen offset:{(q>>1)*640+(q&1)*320}")
        ts(a, 8)
        ts_flush(a, 0)
        a("s_endpgm")

    a.label(f"{name}_helper")
    a("s_sub_u32 s3, s3, 4")
    a("s_and_b32 s32, s3, 1")
    a("s_lshl_b32 s32, s32, 2")
    a("v_lshrrev_b32 v5, 4, v0")
    a("v_add_u32 v6, s32, v5")
    a("v_and_b32 v7, 7, v0")
    a("v_xor_b32 v6, v6, v7")
    a("v_lshlrev_b32 v6, 4, v6")
    a("v_lshrrev_b32 v7, 3, v0")
    a("s_lshl_b32 s33, s3, 3")
    a("v_add_u32 v7, s33, v7")
    a("v_mul_u32_u24 v7, 1280, v7")
    a("v_add_u32 v8, v7, v6")
    a("s_lshl_b32 s33, s3, 2")
    a("v_add_u32 v7, s33, v5")
    a("v_mul_u32_u24 v7, 3840, v7")
    a("v_bfe_u32 v6, v0, 2, 2")
    a("v_xor_b32 v6, v6, v5")
    a("v_lshl_add_u32 v7, v6, 6, v7")
    a("v_and_b32 v6, 3, v0")
    a("v_lshl_add_u32 v9, v6, 4, v7")
    a("s_mul_i32 s34, s30, 163840")
    a("s_lshl_b32 s35, s31, 8")
    a("s_lshl_b32 s36, s3, 10")
    a("s_waitcnt lgkmcnt(0)")
    srd(a, 12, 4, 0, SZ_X)
    srd(a, 16, 6, 0, D * 1920 * 2)
    def issue(c):
        st = (c & 3) * 16384
        for j in range(4):
            a(f"s_add_u32 m0, s36, {st + j*4096}")
            a(f"s_add_u32 s37, s34, {c*128 + j*40960}")
            a("buffer_load_dwordx4 v8, s[12:15], s37 offen lds")
            a(f"s_add_u32 m0, s36, {LB + st + j*4096}")
            a(f"s_add_u32 s38, s35, {(c*64 + j*16)*3840}")
            a("buffer_load_dwordx4 v9, s[16:19], s38 offen lds")
    for c in range(4): issue(c)
    a("s_lshl_b32 s33, s3, 12")
    a("v_lshlrev_b32 v5, 7, v2")
    a("v_add_u32 v5, s33, v5")
    for ks in range(4):
        a(f"v_or_b32 v6, {2*ks}, v3")
        a("v_xor_b32 v6, v6, v4")
        a(f"v_lshl_add_u32 v{10+ks}, v6, 4, v5")
    for i in range(4): a(f"v_mov_b32 v{32+i}, 0")
    a("s_mov_b32 s39, 0xffff0000")
    a("s_waitcnt vmcnt(24)")
    a("s_barrier")
    for c in range(10):
        if c >= 1 and c + 3 <= 9: issue(c + 3)
        st = (c & 3) * 16384
        for ks in range(4):
            a(f"ds_read_b128 {vr(16+ks*4,4)}, v{10+ks} offset:{st}")
        for ks in range(4):
            a(f"s_waitcnt lgkmcnt({3-ks})")
            for i in range(4):
                r = 16 + ks * 4 + i
                t = 36 + (i & 1) * 2
                a(f"v_lshlrev_b32 v{t}, 16, v{r}")
                a(f"v_and_b32 v{t+1}, s39, v{r}")
                a(f"v_add_f32 v32, v32, v{t}")
                a(f"v_add_f32 v33, v33, v{t+1}")
                a(f"v_fma_f32 v34, v{t}, v{t}, v34")
                a(f"v_fma_f32 v35, v{t+1}, v{t+1}, v35")
        if c < 9:
            a(f"s_waitcnt vmcnt({8*(min(c+3,9)-(c+1))})")
        a("s_barrier")
    a("v_add_f32 v32, v32, v33")
    a("v_add_f32 v34, v34, v35")
    swap_sum(a, 32, 36, 32)
    swap_sum(a, 34, 36, 32)
    ln_stats(a, 32, 34, 36)
    a("s_lshl_b32 s33, s3, 7")
    a(f"s_add_u32 s33, s33, {LNM}")
    a("v_lshlrev_b32 v5, 2, v2")
    a("v_add_u32 v5, s33, v5")
    a("ds_write2_b32 v5, v32, v34 offset0:0 offset1:128")
    a("s_waitcnt lgkmcnt(0)")
    a("s_barrier")
    ts_flush(a, 0)
    a("s_endpgm")

    a.label(f"{name}_colsum")
    a("s_sub_u32 s29, s29, 30")
    a("s_lshl_b32 s29, s29, 3")
    a("s_add_u32 s29, s29, s28")
    a("s_lshl_b32 s29, s29, 3")
    a("s_add_u32 s29, s29, s3")
    a("s_cmp_ge_u32 s29, 108")
    a(f"s_cbranch_scc1 {name}_end")
    a("s_waitcnt lgkmcnt(0)")
    a("s_cmp_ge_u32 s29, 54")
    a("s_cselect_b32 s12, s26, s24")
    a("s_cselect_b32 s13, s27, s25")
    a("s_cselect_b32 s30, 54, 0")
    a(f"s_cselect_b32 s31, {CS_UP}, 0")
    a(f"s_mov_b32 s14, {D*F*2}")
    a("s_mov_b32 s15, 0x00020000")
    a("s_sub_u32 s29, s29, s30")
    srd(a, 16, 8, WS_CS, 2 * CS_UP)
    a("v_lshrrev_b32 v1, 2, v0")
    a("v_mul_u32_u24 v1, 3456, v1")
    a("v_and_b32 v2, 3, v0")
    a("v_lshl_add_u32 v1, v2, 4, v1")
    a("s_lshl_b32 s32, s29, 6")
    for i in range(40):
        a(f"s_add_u32 s33, s32, {i*16*3456}")
        a(f"buffer_load_dwordx4 {vr(16+i*4,4)}, v1, s[12:15], s33 offen")
    for i in range(8): a(f"v_mov_b32 v{4+i}, 0")
    a("s_mov_b32 s39, 0xffff0000")
    for i in range(40):
        a(f"s_waitcnt vmcnt({39-i})")
        for j in range(4):
            r = 16 + i * 4 + j
            a(f"v_lshlrev_b32 v{12+(j&1)*2}, 16, v{r}")
            a(f"v_and_b32 v{13+(j&1)*2}, s39, v{r}")
            a(f"v_add_f32 v{4+2*j}, v{4+2*j}, v{12+(j&1)*2}")
            a(f"v_add_f32 v{5+2*j}, v{5+2*j}, v{13+(j&1)*2}")
    for sh in (4, 8):
        for i in range(8):
            a(f"v_add_f32_dpp v{4+i}, v{4+i}, v{4+i} row_ror:{sh} row_mask:0xf bank_mask:0xf")
    for wh in (16, 32):
        for i in range(8): swap_sum(a, 4 + i, 16 + i, wh)
    a("s_lshl_b32 s32, s29, 7")
    a("s_add_u32 s32, s32, s31")
    a("v_lshlrev_b32 v1, 5, v2")
    a("s_mov_b64 exec, 0xf")
    a("buffer_store_dwordx4 v[4:7], v1, s[16:19], s32 offen")
    a("buffer_store_dwordx4 v[8:11], v1, s[16:19], s32 offen offset:16")
    ts_flush(a, 0)
    a.label(f"{name}_end")
    a("s_endpgm")
    return dict(grid=256, block=512, lds=131072 + 2048, vgpr=192)

def k_attn(a, name):
    AK, AB, AV, QA, QB, NEG, SS, PP, OO, KA, KB, VV, SO, MX = 2, 3, 4, 8, 12, 16, 32, 64, 72, 88, 96, 100, 116, 120
    ts_init(a)
    a(f"""
    s_cmp_ge_u32 s2, 256
    s_cbranch_scc1 {name}_end
    s_load_dwordx2 s[8:9], s[0:1], 72
    v_lshrrev_b32 v1, 6, v0
    v_and_b32 v0, 63, v0
    v_readfirstlane_b32 s3, v1
    v_readfirstlane_b32 s101, v1
    s_and_b32 s4, s2, 7
    s_lshl_b32 s4, s4, 2
    s_lshr_b32 s5, s2, 6
    s_add_u32 s4, s4, s5              ; head
    s_bfe_u32 s5, s2, 0x30003         ; qb
    s_mul_i32 s6, s4, 163840
    s_add_u32 s6, s6, {hex(WS_KV)}
    s_lshl_b32 s7, s4, 3
    s_add_u32 s7, s7, s5
    s_lshl_b32 s7, s7, 3
    s_add_u32 s7, s7, s3
    s_mul_i32 s7, s7, 1280
    v_lshlrev_b32 v{AK}, 4, v0
    v_and_b32 v5, 31, v0
    v_lshlrev_b32 v{AB}, 3, v5
    v_add_u32 v{AB}, 1024, v{AB}
    v_mov_b32 v{QB}, 0
    v_mov_b32 v{QB+1}, 0
    s_lshl_b32 m0, s3, 10
    s_waitcnt lgkmcnt(0)
    s_add_u32 s12, s8, s6
    s_addc_u32 s13, s9, 0
    s_mov_b32 s14, 163840
    s_mov_b32 s15, 0x00020000
    """)
    srd(a, 16, 8, WS_Q, SZ_X)
    a(f"buffer_load_dwordx4 {vr(QA,4)}, v{AK}, s[16:19], s7 offen")
    a("s_mov_b32 exec_hi, 0")
    a(f"buffer_load_dwordx2 {vr(QB,2)}, v{AB}, s[16:19], s7 offen")
    a("s_mov_b64 exec, -1")
    for j in range(20):
        a(f"buffer_load_dwordx4 v{AK}, s[12:15], m0 offen lds")
        if j < 19: a("s_add_u32 m0, m0, 8192")
    srd(a, 20, 8, WS_O, SZ_X)
    a("v_lshrrev_b32 v6, 5, v0")
    a("v_mul_u32_u24 v7, 320, v6")
    a(f"v_lshl_add_u32 v{AV}, v5, 4, v7")
    a(f"v_add_u32 v{AV}, 1280, v{AV}")
    a("v_cmp_eq_u32 vcc, 20, v5")
    a("v_mov_b32 v7, 0x3f803f80")
    a(f"v_cndmask_b32 v{VV}, 0, v7, vcc")
    for i in range(1, 16): a(f"v_mov_b32 v{VV+i}, v{VV}")
    a("s_mov_b32 s24, 0x000fffff")
    a("s_mov_b32 s25, 0x000fffff")
    a("s_lshl_b32 s10, s5, 4")
    a("s_lshl_b32 s11, s3, 1")
    a("s_add_u32 s10, s10, s11")
    a("v_bfe_u32 v7, v0, 4, 1")
    a("v_add_u32 v7, s10, v7")
    a("v_mul_u32_u24 v7, 20480, v7")
    a("v_and_b32 v1, 15, v0")
    a("v_lshl_add_u32 v7, v1, 4, v7")
    a("s_mul_i32 s10, s4, 5")
    a("v_add_u32 v6, s10, v6")
    for k in range(3):
        if k: a("v_add_u32 v6, 2, v6")
        a("v_lshrrev_b32 v1, 3, v6")
        a(f"v_lshl_add_u32 v{SO+k}, v1, 10, v7")
        a("v_and_b32 v1, 3, v6")
        a(f"v_lshl_add_u32 v{SO+k}, v1, 8, v{SO+k}")
        a("v_bfe_u32 v1, v6, 2, 1")
        a(f"v_lshl_add_u32 v{SO+k}, v1, 3, v{SO+k}")
    a("s_mov_b32 s26, 1")
    a("s_mov_b32 s27, 1")
    a("s_mov_b32 s28, 4")
    ts(a, 1)
    a("s_waitcnt vmcnt(18)")
    a("s_barrier")
    ts(a, 2)
    a.label(f"{name}_maxpass")
    a(f"v_mov_b32 v{MX}, 0xff800000")
    a(f"v_mov_b32 v{MX+1}, v{AK}")
    a(f"v_mov_b32 v{MX+2}, v{AB}")
    a("s_mov_b32 s29, s26")
    a.label(f"{name}_maxloop")
    a(f"ds_read_b64 {vr(KB,2)}, v{MX+2}")
    a(f"ds_read_b128 {vr(KA,4)}, v{MX+1}")
    a(f"v_add_u32 v{MX+1}, 2560, v{MX+1}")
    a(f"v_add_u32 v{MX+2}, 2560, v{MX+2}")
    a("s_waitcnt lgkmcnt(0)")
    a(f"v_mfma_f32_32x32x8bf16_1k {vr(SS,16)}, {vr(KB,2)}, {vr(QB,2)}, 0")
    a(f"v_mfma_f32_32x32x16_bf16 {vr(SS,16)}, {vr(KA,4)}, {vr(QA,4)}, {vr(SS,16)}")
    for i in range(8): a(f"v_max3_f32 v{MX}, v{SS+2*i}, v{SS+2*i+1}, v{MX}")
    a("s_sub_u32 s29, s29, 1")
    a("s_cmp_lg_u32 s29, 0")
    a(f"s_cbranch_scc1 {name}_maxloop")
    a(f"ds_read_b64 {vr(KB,2)}, v{AB}")
    a(f"ds_read_b128 {vr(KA,4)}, v{AK}")
    a(f"ds_read_b64 {vr(KB+2,2)}, v{AB} offset:2560")
    a(f"ds_read_b128 {vr(KA+4,4)}, v{AK} offset:2560")
    a("s_mov_b64 exec, s[24:25]")
    a(f"ds_read_b128 {vr(VV,4)}, v{AV}")
    a(f"ds_read_b128 {vr(VV+4,4)}, v{AV} offset:640")
    a("s_mov_b64 exec, -1")
    a(f"v_mov_b32 v{MX+1}, v{MX}")
    a(f"v_permlane32_swap_b32 v{MX}, v{MX+1}")
    a(f"v_max_f32 v{MX}, v{MX}, v{MX+1}")
    for i in range(16): a(f"v_sub_f32 v{NEG+i}, 0, v{MX}")
    for i in range(16): a(f"v_mov_b32 v{OO+i}, 0")
    for i in range(4): a(f"v_mov_b32 v{PP+4+i}, 0")
    a("s_waitcnt lgkmcnt(0)")
    a(f"v_mfma_f32_32x32x8bf16_1k {vr(SS,16)}, {vr(KB,2)}, {vr(QB,2)}, {vr(NEG,16)}")
    a(f"v_mfma_f32_32x32x16_bf16 {vr(SS,16)}, {vr(KA,4)}, {vr(QA,4)}, {vr(SS,16)}")
    a("s_mov_b32 s29, 0")
    a("s_nop 7")
    ts(a, 3)

    def step(u, last):
        c, n = u & 1, (u + 1) & 1
        s = SS + 16 * c
        o = u * 2560
        nxt = last is None or last >= 1
        nx2 = last is None or last >= 2
        ex = lambda i: a(f"v_exp_f32 v{s+i}, v{s+i}")
        cv = lambda i: a(f"v_cvt_pk_bf16_f32 v{PP+i}, v{s+2*i}, v{s+2*i+1}")
        a("s_waitcnt lgkmcnt(0)")
        if nxt: a(f"v_mfma_f32_32x32x8bf16_1k {vr(SS+16*n,16)}, {vr(KB+2*n,2)}, {vr(QB,2)}, {vr(NEG,16)}")
        if nx2:
            a(f"ds_read_b64 {vr(KB+2*c,2)}, v{AB} offset:{o+5120}")
            a(f"ds_read_b128 {vr(KA+4*c,4)}, v{AK} offset:{o+5120}")
        ex(0); ex(1); ex(2)
        a(f"v_mfma_f32_32x32x16_bf16 {vr(OO,16)}, {vr(VV+8*n+4,4)}, {vr(PP+4,4)}, {vr(OO,16)}")
        if nxt:
            a("s_mov_b64 exec, s[24:25]")
            a(f"ds_read_b128 {vr(VV+8*n,4)}, v{AV} offset:{o+2560}")
            a(f"ds_read_b128 {vr(VV+8*n+4,4)}, v{AV} offset:{o+2560+640}")
            a("s_mov_b64 exec, -1")
        ex(3); ex(4); ex(5); ex(6)
        if nxt: a(f"v_mfma_f32_32x32x16_bf16 {vr(SS+16*n,16)}, {vr(KA+4*n,4)}, {vr(QA,4)}, {vr(SS+16*n,16)}")
        ex(7); ex(8)
        cv(0); cv(1); cv(2); cv(3)
        ex(9); ex(10)
        a(f"v_mfma_f32_32x32x16_bf16 {vr(OO,16)}, {vr(VV+8*c,4)}, {vr(PP,4)}, {vr(OO,16)}")
        for i in range(11, 16): ex(i)
        cv(4); cv(5); cv(6); cv(7)

    a.label(f"{name}_loop")
    for u in range(4): step(u, None)
    a(f"v_add_u32 v{AK}, 10240, v{AK}")
    a(f"v_add_u32 v{AB}, 10240, v{AB}")
    a(f"v_add_u32 v{AV}, 10240, v{AV}")
    a("s_add_u32 s29, s29, 1")
    a("s_cmp_eq_u32 s29, s27")
    a(f"s_cbranch_scc1 {name}_barB")
    a("s_cmp_eq_u32 s29, s28")
    a(f"s_cbranch_scc1 {name}_barC")
    a("s_cmp_lt_u32 s29, 15")
    a(f"s_cbranch_scc1 {name}_loop")
    for u in range(4): step(u, 3 - u)
    a(f"v_mfma_f32_32x32x16_bf16 {vr(OO,16)}, {vr(VV+12,4)}, {vr(PP+4,4)}, {vr(OO,16)}")
    a(f"v_mov_b32 v{MX}, v{OO+8}")
    a(f"v_mov_b32 v{MX+1}, v{OO+8}")
    a(f"v_permlane32_swap_b32 v{MX}, v{MX+1}")
    a(f"v_cmp_gt_f32 vcc, {f32(2.0**30)}, v{MX+1}")
    a("s_cmp_eq_u64 vcc, -1")
    a(f"s_cbranch_scc1 {name}_done")
    a("s_cmp_eq_u32 s26, 64")
    a(f"s_cbranch_scc1 {name}_done")
    a("s_mov_b32 s26, 64")
    a("s_mov_b32 s27, -1")
    a("s_mov_b32 s28, -1")
    a(f"v_subrev_u32 v{AK}, {15*10240}, v{AK}")
    a(f"v_subrev_u32 v{AB}, {15*10240}, v{AB}")
    a(f"v_subrev_u32 v{AV}, {15*10240}, v{AV}")
    a(f"s_branch {name}_maxpass")
    a.label(f"{name}_barB")
    ts(a, 4)
    a("s_waitcnt vmcnt(14)")
    a("s_barrier")
    ts(a, 5)
    a(f"s_branch {name}_loop")
    a.label(f"{name}_barC")
    ts(a, 6)
    a("s_waitcnt vmcnt(0)")
    a("s_barrier")
    ts(a, 7)
    a(f"s_branch {name}_loop")
    a.label(f"{name}_done")
    ts(a, 8)
    a(f"v_rcp_f32 v{MX}, v{MX+1}")
    for k in range(3):
        for i in range(4): a(f"v_mul_f32 v{OO+4*k+i}, v{OO+4*k+i}, v{MX}")
        a(f"v_cvt_pk_bf16_f32 v{PP+2*k}, v{OO+4*k}, v{OO+4*k+1}")
        a(f"v_cvt_pk_bf16_f32 v{PP+2*k+1}, v{OO+4*k+2}, v{OO+4*k+3}")
        if k == 2: a("s_mov_b32 exec_hi, 0")
        a(f"buffer_store_dwordx2 {vr(PP+2*k,2)}, v{SO+k}, s[20:23], 0 offen")
    ts_flush(a, 1)
    a.label(f"{name}_end")
    a("s_endpgm")
    return dict(grid=256, block=512, lds=163840, vgpr=128)

def k_g24(a, name, which):
    g4 = which == 4
    NKS = 54 if g4 else 20
    AKS = ACT_KS if g4 else 20
    NG = (NKS + 3) // 4
    RING = 5; DEPTH = 3
    NA = 24 if g4 else 20
    WB, WF, ACC, RES, AF = 4, 8, 48, 68, 80
    kidx = 4 if g4 else 2
    ts_init(a)
    a(f"""
    s_cmp_ge_u32 s2, 256
    s_cbranch_scc1 {name}_end
    s_load_dwordx2 s[4:5], s[0:1], {48 if g4 else 16}
    s_load_dwordx2 s[6:7], s[0:1], {56 if g4 else 0}
    s_load_dwordx2 s[8:9], s[0:1], 72
    v_lshrrev_b32 v1, 6, v0
    v_and_b32 v0, 63, v0
    v_readfirstlane_b32 s3, v1
    v_readfirstlane_b32 s101, v1
    s_and_b32 s28, s2, 7
    s_lshl_b32 s28, s28, 2
    s_bfe_u32 s29, s2, 0x20003
    s_add_u32 s28, s28, s29
    s_lshr_b32 s29, s2, 5             ; n tile
    s_cmp_ge_u32 s3, 4
    s_cbranch_scc1 {name}_helper
    s_setprio 2
    v_lshlrev_b32 v2, 4, v0
    s_lshl_b32 s30, s28, 2
    s_add_u32 s30, s30, s3
    s_mul_i32 s31, s30, {AKS*1024}
    s_waitcnt lgkmcnt(0)
    """)
    srd(a, 12, 8, WS_ACT if g4 else WS_O, 128 * AKS * 1024)
    nload = [0]
    def aload(s):
        if s & 3 == 0: a(f"s_add_u32 s32, s31, {s*1024}")
        a(f"buffer_load_dwordx4 {vr(AF+(s%NA)*4,4)}, v2, s[12:15], s32 offen offset:{(s&3)*1024}")
    for s_ in range(4): aload(s_)
    a("v_and_b32 v1, 15, v0")
    a("v_lshrrev_b32 v3, 4, v0")
    a("v_mul_u32_u24 v78, 1280, v1")
    a("v_lshl_add_u32 v78, v3, 3, v78")
    a("s_mul_i32 s33, s30, 20480")
    a("s_mul_i32 s34, s29, 160")
    a("s_add_u32 s33, s33, s34")
    a("v_lshlrev_b32 v79, 4, v1")
    a("v_lshrrev_b32 v1, 1, v3")
    a("v_lshl_add_u32 v79, v1, 9, v79")
    a("v_and_b32 v1, 1, v3")
    a("v_lshl_add_u32 v79, v1, 3, v79")
    a("s_lshr_b32 s34, s30, 1")
    a("s_mul_i32 s34, s34, 40")
    a("s_mul_i32 s35, s29, 5")
    a("s_add_u32 s34, s34, s35")
    a("s_lshl_b32 s34, s34, 10")
    a("s_and_b32 s35, s30, 1")
    a("s_lshl_b32 s35, s35, 8")
    a("s_add_u32 s34, s34, s35")
    a("s_add_u32 s35, s34, 4096")
    srd(a, 16, 6, 0, SZ_X)
    srd(a, 20, 8, WS_H, SZ_X)
    for b in range(5):
        if g4: a(f"buffer_load_dwordx2 {vr(RES+2*b,2)}, v79, s[20:23], s{35 if b == 4 else 34} offen offset:{(b&3)*1024}")
        else:  a(f"buffer_load_dwordx2 {vr(RES+2*b,2)}, v78, s[16:19], s33 offen offset:{b*32}")
    for s_ in range(4, NA): aload(s_)
    a("v_lshrrev_b32 v1, 2, v0")
    a(f"v_mul_u32_u24 v{WB}, 160, v1")
    a("v_and_b32 v1, 3, v0")
    a(f"v_lshl_add_u32 v{WB}, v1, 3, v{WB}")
    a(f"v_add_u32 v{WB+1}, 61440, v{WB}")
    a(f"v_add_u32 v{WB+2}, 122880, v{WB}")
    for i in range(20): a(f"v_mov_b32 v{ACC+i}, 0")
    def wread(s, b, h):
        pos = s % (RING * 4)
        a(f"ds_read_b64_tr_b16 {vr(WF+(s&1)*20+b*4+2*h,2)}, v{WB+pos//12} offset:{(pos%12)*5120+b*32+h*2560}")
    ts(a, 1)
    a("s_barrier")
    ts(a, 2)
    for b in range(5): wread(0, b, 0); wread(0, b, 1)
    issued = NA
    for s_ in range(NKS):
        last_in_group = (s_ & 3) == 3 or s_ == NKS - 1
        vm = issued - 1 - s_ + (5 if s_ < 4 else 0)
        a(f"s_waitcnt vmcnt({vm}) lgkmcnt({0 if last_in_group else 8})")
        if last_in_group:
            a("s_barrier")
            if PROF and s_ in ((3, 7, 11, 15, 19) if not g4 else (3, 15, 27, 39, 53)): ts(a, 3 + (s_ // (12 if g4 else 4)))
        for b in range(5):
            if b and not last_in_group: a(f"s_waitcnt lgkmcnt(8)")
            a(f"v_mfma_f32_16x16x32_bf16 {vr(ACC+4*b,4)}, {vr(WF+(s_&1)*20+b*4,4)}, {vr(AF+(s_%NA)*4,4)}, {vr(ACC+4*b,4)}")
            if s_ + 1 < NKS: wread(s_ + 1, b, 0); wread(s_ + 1, b, 1)
        if s_ >= 1 and issued < NKS:
            aload(issued); issued += 1
    ts(a, 8)
    a("s_mov_b32 s39, 0xffff0000")
    if not g4:
        for i in range(4): a(f"v_mov_b32 v{8+i}, 0")
    for b in range(5):
        r, x, t = ACC + 4 * b, RES + 2 * b, 12 + (b & 1) * 4
        for h in range(2):
            a(f"v_lshlrev_b32 v{t+2*h}, 16, v{x+h}")
            a(f"v_and_b32 v{t+2*h+1}, s39, v{x+h}")
        for h in range(2):
            a(f"v_pk_add_f32 {vr(r+2*h,2)}, {vr(r+2*h,2)}, {vr(t+2*h,2)}")
        for h in range(2):
            a(f"v_cvt_pk_bf16_f32 v{x+h}, v{r+2*h}, v{r+2*h+1}")
        if g4:
            a(f"buffer_store_dwordx2 {vr(x,2)}, v78, s[16:19], s33 offen offset:{b*32}")
        else:
            a(f"buffer_store_dwordx2 {vr(x,2)}, v79, s[20:23], s{35 if b == 4 else 34} offen offset:{(b&3)*1024}")
            for h in range(2):
                a(f"v_lshlrev_b32 v{t+2*h}, 16, v{x+h}")
                a(f"v_and_b32 v{t+2*h+1}, s39, v{x+h}")
            for h in range(2):
                a(f"v_pk_add_f32 v[8:9], v[8:9], {vr(t+2*h,2)}")
                a(f"v_pk_fma_f32 v[10:11], {vr(t+2*h,2)}, {vr(t+2*h,2)}, v[10:11]")
    if not g4:
        a("v_add_f32 v8, v8, v9")
        a("v_add_f32 v9, v10, v11")
        for wh in (16, 32):
            a("v_mov_b32 v10, v8")
            a("v_mov_b32 v11, v9")
            a(f"v_permlane{wh}_swap_b32 v8, v10")
            a(f"v_permlane{wh}_swap_b32 v9, v11")
            a("v_pk_add_f32 v[8:9], v[8:9], v[10:11]")
        srd(a, 24, 8, WS_ST, 8 * S * 8)
        a("s_lshl_b32 s36, s29, 14")
        a("s_lshl_b32 s37, s30, 7")
        a("s_add_u32 s36, s36, s37")
        a("v_lshlrev_b32 v1, 3, v0")
        a("s_mov_b64 exec, 0xffff")
        a("buffer_store_dwordx2 v[8:9], v1, s[24:27], s36 offen")
    ts_flush(a, kidx)
    a("s_endpgm")
    a.label(f"{name}_helper")
    a("s_sub_u32 s3, s3, 4")
    for p_ in range(5):
        a(f"v_add_u32 v2, {p_*64}, v0")
        a("v_mul_u32_u24 v3, 6554, v2")
        a("v_lshrrev_b32 v3, 16, v3")
        a("v_mul_u32_u24 v4, 1120, v3")
        a(f"v_lshl_add_u32 v{8+p_}, v2, 4, v4")
    a("s_mul_i32 s30, s3, 40960")
    a("s_mul_i32 s31, s29, 160")
    a("s_add_u32 s30, s30, s31")
    a("s_mul_i32 s31, s3, 5120")
    a("s_waitcnt lgkmcnt(0)")
    srd(a, 12, 4, 0, NKS * 32 * 1280)
    def gissue(g):
        a(f"s_add_u32 s32, s30, {g*4*40960}")
        for p_ in range(5):
            a(f"s_add_u32 m0, s31, {(g%RING)*20480 + p_*1024}")
            a(f"buffer_load_dwordx4 v{8+p_}, s[12:15], s32 offen lds")
    gissue(0); gissue(1)
    a("s_waitcnt vmcnt(5)")
    a("s_barrier")
    nxt = 2
    for g in range(NG):
        lim = min(NG, g + RING)
        while nxt < lim and nxt <= g + DEPTH:
            gissue(nxt); nxt += 1
        if g + 1 < NG: a(f"s_waitcnt vmcnt({min(63, 5*(nxt-1-(g+1)))})")
        a("s_barrier")
    ts_flush(a, kidx)
    a.label(f"{name}_end")
    a("s_endpgm")
    return dict(grid=256, block=512, lds=RING * 20480, vgpr=AF + NA * 4)

def k_g3(a, name):
    STG = 28672 + 256
    UPO = 14336 + 128
    RING, DEPTH, NA = 5, 3, 16
    LCS = RING * STG
    WB, WF, ACC, AF = 4, 8, 64, 176
    ts_init(a)
    a(f"""
    s_cmp_ge_u32 s2, 256
    s_cbranch_scc1 {name}_end
    s_load_dwordx4 s[4:7], s[0:1], 32
    s_load_dwordx2 s[8:9], s[0:1], 72
    v_lshrrev_b32 v1, 6, v0
    v_and_b32 v0, 63, v0
    v_readfirstlane_b32 s3, v1
    v_readfirstlane_b32 s101, v1
    s_and_b32 s28, s2, 3
    s_lshl_b32 s28, s28, 2
    s_bfe_u32 s29, s2, 0x20003
    s_add_u32 s28, s28, s29
    s_bfe_u32 s29, s2, 0x10002
    s_lshl_b32 s29, s29, 3
    s_lshr_b32 s30, s2, 5
    s_add_u32 s29, s29, s30
    s_cmp_ge_u32 s3, 4
    s_cbranch_scc1 {name}_helper
    s_setprio 2
    v_lshlrev_b32 v2, 4, v0
    s_lshl_b32 s30, s28, 2
    s_add_u32 s30, s30, s3
    s_mul_i32 s31, s30, 40960
    s_waitcnt lgkmcnt(0)
    """)
    srd(a, 12, 8, WS_H, SZ_X)
    def aload(s):
        if s & 3 == 0: a(f"s_add_u32 s32, s31, {s*1024}")
        a(f"buffer_load_dwordx4 {vr(AF+(s%NA)*4,4)}, v2, s[12:15], s32 offen offset:{(s&3)*1024}")
    for s_ in range(4): aload(s_)
    srd(a, 16, 8, WS_ST, 8 * S * 8)
    a("v_and_b32 v1, 31, v0")
    a("v_lshrrev_b32 v3, 5, v0")
    a("v_lshlrev_b32 v240, 3, v1")
    a("v_lshl_add_u32 v240, v3, 16, v240")
    a("s_lshl_b32 s33, s30, 8")
    for i in range(4):
        a(f"buffer_load_dwordx2 {vr(242+2*i,2)}, v240, s[16:19], s33 offen")
        if i < 3: a("s_add_u32 s33, s33, 16384")
    for s_ in range(4, NA): aload(s_)
    a("v_bfe_u32 v240, v0, 2, 2")
    a("v_lshl_add_u32 v240, v3, 3, v240")
    a(f"v_mul_u32_u24 v{WB}, 224, v240")
    a("v_bfe_u32 v240, v0, 4, 1")
    a(f"v_mul_u32_u24 v240, {UPO}, v240")
    a(f"v_add_u32 v{WB}, v{WB}, v240")
    a("v_and_b32 v240, 3, v0")
    a(f"v_lshl_add_u32 v{WB}, v240, 3, v{WB}")
    a(f"v_add_u32 v{WB+1}, {2*STG}, v{WB}")
    a(f"v_add_u32 v{WB+2}, {4*STG}, v{WB}")
    for i in range(112): a(f"v_mov_b32 v{ACC+i}, 0")
    srd(a, 20, 8, WS_ACT, 128 * ACT_KS * 1024)
    a("v_bfe_u32 v240, v0, 4, 1")
    a(f"v_mul_u32_u24 v250, {ACT_KS*1024}, v240")
    a("v_and_b32 v240, 15, v0")
    a("v_lshl_add_u32 v250, v240, 4, v250")
    a("v_lshl_add_u32 v250, v3, 8, v250")
    a(f"s_mul_i32 s34, s30, {2*ACT_KS*1024}")
    a("s_mul_i32 s35, s29, 7")
    a("s_lshr_b32 s35, s35, 1")
    a("s_lshl_b32 s35, s35, 10")
    a("s_add_u32 s34, s34, s35")
    def wread(s, b, h):
        st = (s >> 2) % RING
        a(f"ds_read_b64_tr_b16 {vr(WF+(s&1)*28+b*4+2*h,2)}, v{WB+st//2} offset:{(st&1)*STG+(s&3)*3584+b*32+h*896}")
    ts(a, 1)
    a("s_barrier")
    ts(a, 2)
    for b in range(7): wread(0, b, 0); wread(0, b, 1)
    issued = NA
    for s_ in range(40):
        lig = (s_ & 3) == 3
        vm = issued - 1 - s_ + (4 if s_ < 4 else 0)
        a(f"s_waitcnt vmcnt({vm}) lgkmcnt(12)")
        for b in range(7):
            if lig and b == 3:
                a("s_waitcnt lgkmcnt(0)")
                a("s_barrier")
                if PROF and s_ in (3, 11, 19, 27, 39): ts(a, 3 + min(4, s_ // 8))
            elif b and not (lig and b > 3):
                a(f"s_waitcnt lgkmcnt({12 - 2*b if lig else 12})")
            a(f"v_mfma_f32_32x32x16_bf16 {vr(ACC+16*b,16)}, {vr(WF+(s_&1)*28+b*4,4)}, {vr(AF+(s_%NA)*4,4)}, {vr(ACC+16*b,16)}")
            if s_ + 1 < 40:
                if not lig: wread(s_ + 1, b, 0); wread(s_ + 1, b, 1)
                elif b >= 3:
                    for bb in {3: (0, 1), 4: (2, 3), 5: (4, 5), 6: (6,)}[b]: wread(s_ + 1, bb, 0); wread(s_ + 1, bb, 1)
            if b == 1 and s_ >= 1 and issued < 40:
                aload(issued); issued += 1
        if s_ == 5:
            for i in (244, 246, 248):
                a(f"v_add_f32 v242, v242, v{i}")
                a(f"v_add_f32 v243, v243, v{i+1}")
            swap_sum(a, 242, 244, 32)
            swap_sum(a, 243, 244, 32)
            ln_stats(a, 242, 243, 244)
            a("v_mul_f32 v243, v243, v243")
    ts(a, 8)
    a("v_lshlrev_b32 v1, 4, v3")
    a(f"v_add_u32 v1, {LCS}, v1")
    def csread(b):
        d = 8 + (b % 3) * 16
        for u in range(2):
            for q in range(2):
                a(f"ds_read_b128 {vr(d+u*8+q*4,4)}, v1 offset:{u*448+b*64+q*32}")
    def blk(b):
        d = 8 + (b % 3) * 16
        r = ACC + 16 * b
        for i in range(0, 16, 2):
            a(f"v_pk_fma_f32 {vr(r+i,2)}, {vr(d+i,2)}, v[242:243], {vr(r+i,2)} op_sel_hi:[1,0,1]")
        for i in range(8): a(f"v_max_f32 v{r+i}, 0, v{r+i}")
        for i in range(0, 8, 2):
            a(f"v_pk_mul_f32 {vr(r+8+i,2)}, {vr(r+8+i,2)}, v[242:243] op_sel:[0,1] op_sel_hi:[1,1]")
        for i in range(0, 8, 2):
            a(f"v_pk_mul_f32 {vr(r+i,2)}, {vr(r+i,2)}, {vr(r+8+i,2)}")
    def body(odd):
        csread(0); csread(1)
        for b in range(7):
            if b + 2 < 7: csread(b + 2)
            a(f"s_waitcnt lgkmcnt({4*min(2, 6-b)})")
            blk(b)
            r = ACC + 16 * b
            B = b + odd
            o = 176 + (B >> 1) * 8
            for q in range(2):
                for i in range(2):
                    a(f"v_cvt_pk_bf16_f32 v{o+q*4+(B&1)*2+i}, v{r+q*4+2*i}, v{r+q*4+2*i+1}")
            for q in range(2):
                off = (B >> 1) * 1024 + q * 512
                if B & 1 and b > 0:
                    a(f"buffer_store_dwordx4 {vr(o+q*4,4)}, v250, s[20:23], s34 offen offset:{off}")
                elif B & 1:
                    a(f"buffer_store_dwordx2 {vr(o+q*4+2,2)}, v250, s[20:23], s34 offen offset:{off+8}")
                elif b == 6:
                    a(f"buffer_store_dwordx2 {vr(o+q*4,2)}, v250, s[20:23], s34 offen offset:{off}")
    a("s_bitcmp1_b32 s29, 0")
    a(f"s_cbranch_scc1 {name}_odd")
    body(0)
    ts_flush(a, 3)
    a("s_endpgm")
    a.label(f"{name}_odd")
    body(1)
    ts_flush(a, 3)
    a("s_endpgm")
    a.label(f"{name}_helper")
    a("s_sub_u32 s3, s3, 4")
    for p_ in range(7):
        a(f"v_add_u32 v2, {p_*64}, v0")
        a("v_mul_u32_u24 v3, 4682, v2")
        a("v_lshrrev_b32 v3, 16, v3")
        a("v_mul_u32_u24 v4, 3232, v3")
        a(f"v_lshl_add_u32 v{8+p_}, v2, 4, v4")
    a("s_and_b32 s32, s3, 1")
    a(f"s_mul_i32 s30, s32, {32*3456}")
    a("s_mul_i32 s31, s29, 224")
    a("s_add_u32 s30, s30, s31")
    a("s_mul_i32 s31, s32, 7168")
    a("s_cmp_ge_u32 s3, 2")
    a(f"s_cselect_b32 s33, {UPO}, 0")
    a("s_add_u32 s31, s31, s33")
    a("s_waitcnt lgkmcnt(0)")
    a("s_cmp_ge_u32 s3, 2")
    a("s_cselect_b32 s12, s6, s4")
    a("s_cselect_b32 s13, s7, s5")
    a(f"s_mov_b32 s14, {D*F*2}")
    a("s_mov_b32 s15, 0x00020000")
    def gissue(g):
        a(f"s_add_u32 s32, s30, {g*64*3456}")
        for p_ in range(7):
            a(f"s_add_u32 m0, s31, {(g%RING)*STG + p_*1024}")
            a(f"buffer_load_dwordx4 v{8+p_}, s[12:15], s32 offen lds")
    gissue(0)
    srd(a, 16, 8, WS_CS, 2 * CS_UP)
    a("s_mul_i32 s34, s29, 448")
    a("s_and_b32 s35, s3, 1")
    a("s_mul_i32 s35, s35, 224")
    a("s_add_u32 s34, s34, s35")
    a("s_cmp_ge_u32 s3, 2")
    a(f"s_cselect_b32 s36, {CS_UP}, 0")
    a("s_add_u32 s34, s34, s36")
    a("v_lshlrev_b32 v2, 2, v0")
    a("buffer_load_dword v16, v2, s[16:19], s34 offen")
    gissue(1)
    a("s_mul_i32 s35, s3, 224")
    a(f"s_add_u32 s35, s35, {LCS}")
    a("v_add_u32 v2, s35, v2")
    a("s_waitcnt vmcnt(7)")
    a("s_mov_b32 exec_hi, 0xffffff")
    a("ds_write_b32 v2, v16")
    a("s_mov_b32 exec_hi, -1")
    a("s_waitcnt lgkmcnt(0)")
    a("s_barrier")
    nxt = 2
    for g in range(10):
        lim = min(10, g + RING)
        while nxt < lim and nxt <= g + DEPTH:
            gissue(nxt); nxt += 1
        if g + 1 < 10: a(f"s_waitcnt vmcnt({7*(nxt-1-(g+1))})")
        a("s_barrier")
    ts_flush(a, 3)
    a.label(f"{name}_end")
    a("s_endpgm")
    return dict(grid=256, block=512, lds=LCS + 1024, vgpr=256)

KERNELS = [("k_qkv_kernel", k_qkv), ("k_attn_kernel", k_attn), ("k_g2_kernel", lambda a, n: k_g24(a, n, 2)),
           ("k_g3_kernel", k_g3), ("k_g4_kernel", lambda a, n: k_g24(a, n, 4))]

HEADER = open("sequential_preLN__mha_block__glu_gated_reglu__prompt.s.ref").read().split("; Override")[0]

def build(kernels=None, report=False):
    kernels = kernels or KERNELS
    launch, body, desc = "", "", '.section .rodata,"a"\n'
    for name, fn in kernels:
        a = Asm()
        cfg = fn(a, name)
        rep = []
        a.fix(rep)
        if report:
            print(name, "instrs", len(a.items), "nops inserted", len(rep), sum(r[1] for r in rep))
        launch += f"; @launch kernel={name} grid=({cfg['grid']},1,1) block=({cfg['block']},1,1) lds={cfg['lds']}\n"
        body += f".globl {name}\n.p2align 8\n.type {name},@function\n{name}:\n" + a.text()
        v = (cfg["vgpr"] + 7) // 8 * 8
        desc += f""".p2align 6
.amdhsa_kernel {name}
  .amdhsa_next_free_vgpr {v}
  .amdhsa_next_free_sgpr 102
  .amdhsa_accum_offset {v}
  .amdhsa_group_segment_fixed_size 0
  .amdhsa_kernarg_size 80
  .amdhsa_user_sgpr_count 2
  .amdhsa_user_sgpr_kernarg_segment_ptr 1
  .amdhsa_system_sgpr_workgroup_id_x 1
.end_amdhsa_kernel
"""
    return HEADER + launch + '.amdgcn_target "amdgcn-amd-amdhsa--gfx950"\n.text\n' + body + desc

if __name__ == "__main__":
    out = sys.argv[1] if len(sys.argv) > 1 else "sequential_preLN__mha_block__glu_gated_reglu__prompt.s"
    if len(sys.argv) > 2 and sys.argv[2] == "prof": PROF = True
    if len(sys.argv) > 2 and sys.argv[2] == "dbg": DBG = True
    open(out, "w").write(build(report=True))
```

```python
import sys, struct
sys.path.insert(0, "dev")
from asmb import Asm

S, D, H, DH, F = 2048, 640, 32, 20, 1728
WS_Q, WS_KV, WS_O, WS_H, WS_ACT = 0x0, 0x300000, 0x800000, 0xB00000, 0xE00000
WS_ST, WS_CS, WS_WP = 0x1500000, 0x1540000, 0x1600000
WP_UNITS = 7440
WS_WDP, WS_WOP, WS_WGP = WS_WP, WS_WP + 2160 * 1024, WS_WP + 2960 * 1024
OPT = {}
SZ_X = S * D * 2
ACT_KS = 56
CS_UP = 1792 * 4

def f32(x): return "0x%08x" % struct.unpack("<I", struct.pack("<f", x))[0]
def vr(b, n): return f"v[{b}:{b+n-1}]" if n > 1 else f"v{b}"

def srd(a, d, ptr, off, size):
    if off:
        a(f"s_add_u32 s{d}, s{ptr}, {hex(off)}")
        a(f"s_addc_u32 s{d+1}, s{ptr+1}, 0")
    else:
        a(f"s_mov_b32 s{d}, s{ptr}")
        a(f"s_mov_b32 s{d+1}, s{ptr+1}")
    a(f"s_mov_b32 s{d+2}, {hex(size)}")
    a(f"s_mov_b32 s{d+3}, 0x00020000")

PROF = False
WS_PROF = 0x3000000
def ts(a, slot, real=False):
    if PROF: a(f"{'s_memrealtime' if real else 's_memtime'} s[{64+2*slot}:{65+2*slot}]")
def ts_flush(a, kidx, n=12):
    if DBG: dbg_stamp(a, kidx)
    if not PROF: return
    a("s_waitcnt vmcnt(0)")
    ts(a, n - 2); ts(a, n - 1, True)
    a("s_mov_b64 exec, 1")
    srd(a, 96, 8, WS_PROF, 0x1000000)
    a(f"s_add_u32 s100, s2, {kidx*256}")
    a("s_lshl_b32 s100, s100, 3")
    a("s_add_u32 s100, s100, s101")
    a("s_lshl_b32 s100, s100, 6")
    a("v_mov_b32 v1, s100")
    a("s_waitcnt lgkmcnt(0)")
    for i in range(n):
        a(f"v_mov_b32 v0, s{64+2*i}")
        a(f"buffer_store_dword v0, v1, s[96:99], 0 offen offset:{i*4}")
    a("s_waitcnt vmcnt(0)")
DBG = False
def dbg_stamp(a, kidx):
    lab = a.newlabel(f"dbgskip{kidx}")
    a("s_waitcnt vmcnt(0)")
    a("s_or_b32 s100, s2, s101")
    a("s_cmp_lg_u32 s100, 0")
    a(f"s_cbranch_scc1 {lab}")
    a("s_load_dwordx2 s[96:97], s[0:1], 64")
    a("s_memrealtime s[66:67]")
    a("s_waitcnt lgkmcnt(0)")
    a(f"s_add_u32 s96, s96, {(4-kidx)*512}")
    a("s_addc_u32 s97, s97, 0")
    a("s_mov_b32 s98, 64")
    a("s_mov_b32 s99, 0x00020000")
    a("s_mov_b64 exec, 1")
    a("v_mov_b32 v0, s64")
    a("v_mov_b32 v1, s66")
    a(f"v_mov_b32 v2, {kidx*8}")
    a("buffer_store_dwordx2 v[0:1], v2, s[96:99], 0 offen")
    a("s_waitcnt vmcnt(0)")
    if kidx == 0:
        srd(a, 96, 8, WS_PROF, 64)
        a("buffer_store_dword v0, v2, s[96:99], 0 offen")
        a("s_waitcnt vmcnt(0)")
    a.label(lab)
def ts_init(a):
    if DBG: a("s_memrealtime s[64:65]")
    if not PROF: return
    ts(a, 0); ts(a, 9, True)
    for i in range(1, 9): a(f"s_mov_b32 s{64+2*i}, 0")

def bf16_round(a, v, tmp=None):
    a(f"v_cvt_pk_bf16_f32 v{v}, v{v}, v{v}")
    a(f"v_and_b32 v{v}, 0xffff0000, v{v}")

def ln_stats(a, s1, s2, t, n=640):
    a(f"v_mul_f32 v{s1}, {f32(1.0/n)}, v{s1}")
    a(f"v_mul_f32 v{s2}, {f32(1.0/n)}, v{s2}")
    a(f"v_fma_f32 v{s2}, -v{s1}, v{s1}, v{s2}")
    a(f"v_max_f32 v{s2}, 0, v{s2}")
    bf16_round(a, s2)
    a(f"v_add_f32 v{s2}, {f32(1e-5)}, v{s2}")
    bf16_round(a, s2)
    a(f"v_sqrt_f32 v{s2}, v{s2}")
    bf16_round(a, s2)
    a(f"v_rcp_f32 v{s2}, v{s2}")
    bf16_round(a, s1)
    a(f"v_sub_f32 v{s1}, 0, v{s1}")

def swap_sum(a, v, t, which):
    a(f"v_mov_b32 v{t}, v{v}")
    a(f"v_permlane{which}_swap_b32 v{v}, v{t}")
    a(f"v_add_f32 v{v}, v{v}, v{t}")

def k_qkv(a, name):
    LB = 65536
    LCS, LNM, LRS = 131072, 131072 + 512, 131072 + 1024
    ts_init(a)
    a(f"""
    s_cmp_ge_u32 s2, 256
    s_cbranch_scc1 {name}_end
    s_load_dwordx4 s[4:7], s[0:1], 0
    s_load_dwordx4 s[24:27], s[0:1], 32
    s_load_dwordx2 s[8:9], s[0:1], 72
    v_lshrrev_b32 v1, 6, v0
    v_and_b32 v0, 63, v0
    v_readfirstlane_b32 s3, v1
    v_readfirstlane_b32 s101, v1
    s_and_b32 s28, s2, 7
    s_lshr_b32 s29, s2, 3
    s_cmp_ge_u32 s29, 30
    s_cbranch_scc1 {name}_colsum
    s_lshr_b32 s30, s28, 2
    s_mul_i32 s30, s30, 30
    s_add_u32 s30, s30, s29          ; t
    s_lshr_b32 s31, s30, 2           ; cb
    s_and_b32 s30, s30, 3
    s_and_b32 s28, s28, 3
    s_lshl_b32 s28, s28, 2
    s_add_u32 s30, s30, s28          ; rb
    v_and_b32 v2, 31, v0             ; l&31
    v_lshrrev_b32 v3, 5, v0          ; hf
    v_bfe_u32 v4, v0, 1, 3           ; ((l&31)>>1)&7
    s_cmp_ge_u32 s3, 4
    s_cbranch_scc1 {name}_helper
    """)
    XA, WA, XF, WF, ACC, CSA, ONES, SO = 8, 12, 16, 32, 48, 112, 116, 120
    a("s_setprio 2")
    a("s_and_b32 s32, s3, 1")
    a("s_lshr_b32 s33, s3, 1")
    a("s_lshl_b32 s34, s32, 13")
    a("v_lshlrev_b32 v5, 7, v2")
    a("v_add_u32 v5, s34, v5")
    for ks in range(4):
        a(f"v_or_b32 v6, {2*ks}, v3")
        a("v_xor_b32 v6, v6, v4")
        a(f"v_lshl_add_u32 v{XA+ks}, v6, 4, v5")
    a("v_bfe_u32 v5, v0, 2, 2")
    a("v_lshl_add_u32 v6, v3, 3, v5")
    a("v_lshlrev_b32 v6, 8, v6")
    a("v_bfe_u32 v7, v0, 4, 1")
    a("v_lshl_add_u32 v6, v7, 5, v6")
    a("v_and_b32 v7, 3, v0")
    a("v_lshl_add_u32 v6, v7, 3, v6")
    a(f"v_add_u32 v6, {LB}, v6")
    a("s_lshl_b32 s35, s33, 1")
    a("s_add_u32 s35, s35, s32")
    for blk in range(2):
        a(f"s_xor_b32 s36, s35, {blk}")
        a("v_xor_b32 v7, s36, v5")
        a(f"v_lshl_add_u32 v{WA+blk}, v7, 6, v6")
    a("v_and_b32 v5, 15, v0")
    a("v_bfe_u32 v6, v0, 4, 1")
    a("v_cmp_eq_u32 vcc, v5, v6")
    a("v_mov_b32 v5, 0x3f803f80")
    a(f"v_cndmask_b32 v{ONES}, 0, v5, vcc")
    for i in range(1, 4): a(f"v_mov_b32 v{ONES+i}, v{ONES}")
    for i in range(68): a(f"v_mov_b32 v{ACC+i}, 0")
    a("s_waitcnt lgkmcnt(0)")
    a("s_cmp_ge_u32 s31, 10")
    a(f"s_cbranch_scc1 {name}_vsetup")
    a("s_cmp_ge_u32 s31, 5")
    a("s_cselect_b32 s37, 5, 0")
    a("s_sub_u32 s37, s31, s37")
    a("s_cmp_ge_u32 s31, 5")
    a(f"s_cselect_b32 s38, {hex(WS_KV)}, {hex(WS_Q)}")
    a("s_movk_i32 s39, 1280")
    a("s_cselect_b32 s39, 2560, s39")
    a(f"s_cselect_b32 s40, {f32(1.0)}, {f32(DH ** -0.5 * 1.4426950408889634)}")
    a("s_add_u32 s20, s8, s38")
    a("s_addc_u32 s21, s9, 0")
    a("s_lshl_b32 s22, s39, 11")
    a("s_mov_b32 s23, 0x00020000")
    a("s_lshl_b32 s41, s39, 6")
    a("s_lshl_b32 s42, s30, 2")
    a("s_lshl_b32 s43, s32, 1")
    a("s_add_u32 s42, s42, s43")
    a("s_mul_i32 s42, s42, s39")
    a("s_add_u32 s43, s42, s39")
    a("v_bfe_u32 v5, v2, 2, 1")
    a("v_bfe_u32 v6, v2, 3, 1")
    a("v_xor_b32 v5, v5, v6")
    a("v_mul_u32_u24 v5, 12, v5")
    a("v_xor_b32 v5, v5, v2")
    a("s_cmp_ge_u32 s31, 5")
    a("s_cselect_b64 vcc, -1, 0")
    a("v_cndmask_b32 v5, v2, v5, vcc")
    a("v_lshlrev_b32 v5, 4, v5")
    a("s_lshl_b32 s44, s37, 5")
    a("s_lshl_b32 s45, s33, 4")
    a("s_add_u32 s44, s44, s45")
    for fb in range(2):
        a(f"s_xor_b32 s45, s32, {fb}")
        a("s_lshl_b32 s45, s45, 3")
        a("s_add_u32 s45, s45, s44")
        a("v_add_u32 v6, s45, v3")
        for q in range(4):
            d = SO + fb * 4 + q
            a(f"v_add_u32 v7, {2*q}, v6")
            a("v_mul_u32_u24 v1, 205, v7")
            a("v_lshrrev_b32 v1, 10, v1")
            a("v_mul_u32_u24 v4, 5, v1")
            a("v_sub_u32 v7, v7, v4")
            a(f"v_mul_lo_u32 v{d}, v1, s41")
            a("v_lshrrev_b32 v1, 1, v7")
            a(f"v_lshl_add_u32 v{d}, v1, 9, v{d}")
            a("v_and_b32 v1, 1, v7")
            a(f"v_lshl_add_u32 v{d}, v1, 3, v{d}")
            a("v_lshrrev_b32 v1, 2, v7")
            a("v_lshrrev_b32 v1, v1, v5")
            a(f"v_add_u32 v{d}, v{d}, v1")

    def reads(n):
        c, ks = n >> 2, n & 3
        st = (c & 3) * 16384
        b = n & 1
        for blk in range(2):
            a(f"ds_read_b128 {vr(XF+b*8+blk*4,4)}, v{XA+ks} offset:{st+blk*4096}")
        for blk in range(2):
            a(f"ds_read_b64_tr_b16 {vr(WF+b*8+blk*4,2)}, v{WA+blk} offset:{st+ks*4096}")
            a(f"ds_read_b64_tr_b16 {vr(WF+b*8+blk*4+2,2)}, v{WA+blk} offset:{st+ks*4096+1024}")

    def mainloop(isv):
        ts(a, 1)
        a("s_barrier")
        ts(a, 2)
        reads(0)
        for n in range(40):
            b = n & 1
            if (n & 3) == 3:
                a("s_waitcnt lgkmcnt(0)")
                a("s_barrier")
                if n in (3, 15, 27, 39): ts(a, 3 + n // 12)
                if n < 39: reads(n + 1)
            else:
                reads(n + 1)
                a("s_waitcnt lgkmcnt(6)")
            for fb in range(2):
                for tb in range(2):
                    acc = vr(ACC + (fb * 2 + tb) * 16, 16)
                    x, w = vr(XF + b * 8 + tb * 4, 4), vr(WF + b * 8 + fb * 4, 4)
                    if isv: a(f"v_mfma_f32_32x32x16_bf16 {acc}, {x}, {w}, {acc}")
                    else:   a(f"v_mfma_f32_32x32x16_bf16 {acc}, {w}, {x}, {acc}")
            a(f"v_mfma_f32_16x16x32_bf16 {vr(CSA,4)}, {vr(ONES,4)}, {vr(WF+b*8,4)}, {vr(CSA,4)}")

    def cs_publish():
        a("s_lshl_b32 s46, s33, 1")
        a("s_add_u32 s46, s46, s32")
        a("s_lshl_b32 s46, s46, 7")
        a(f"s_add_u32 s46, s46, {LCS}")
        a("v_lshlrev_b32 v1, 2, v0")
        a("v_add_u32 v1, s46, v1")
        a("s_mov_b64 exec, 0xffff")
        a(f"ds_write2_b32 v1, v{CSA}, v{CSA+1} offset0:0 offset1:16")
        a("s_mov_b64 exec, -1")
        a("s_waitcnt lgkmcnt(0)")
        a("s_barrier")
        ts(a, 7)

    for isv in (0, 1):
        if isv:
            a.label(f"{name}_vsetup")
            srd(a, 20, 8, WS_KV, 32 * 163840)
            a("s_sub_u32 s37, s31, 10")
            a("s_lshl_b32 s42, s30, 2")
            a("s_lshl_b32 s43, s32, 1")
            a("s_add_u32 s42, s42, s43")
            a("s_mul_i32 s42, s42, 2560")
            a("s_add_u32 s43, s42, 2560")
            a("s_lshl_b32 s44, s37, 7")
            a("s_lshl_b32 s45, s33, 6")
            a("s_add_u32 s44, s44, s45")
            a("s_mov_b32 s41, 163840")
            for fb in range(2):
                d = SO + fb
                a(f"s_xor_b32 s45, s32, {fb}")
                a("s_lshl_b32 s45, s45, 5")
                a("s_add_u32 s45, s45, s44")
                a(f"v_add_u32 v7, s45, v2")
                a("v_mul_u32_u24 v1, 3277, v7")
                a("v_lshrrev_b32 v1, 16, v1")
                a("v_mul_u32_u24 v4, 20, v1")
                a("v_sub_u32 v7, v7, v4")
                a(f"v_mul_lo_u32 v{d}, v1, s41")
                a(f"v_lshl_add_u32 v{d}, v7, 4, v{d}")
                a(f"v_lshl_add_u32 v{d}, v3, 3, v{d}")
                a(f"v_add_u32 v{d}, 1280, v{d}")
        mainloop(isv)
        cs_publish()
        T = 16
        if not isv:
            a("v_lshlrev_b32 v1, 4, v3")
            a("v_add_u32 v1, s46, v1")
            a("v_xor_b32 v4, 128, v1")
            for fb in range(2):
                for q in range(4):
                    a(f"ds_read_b128 {vr(128+fb*16+q*4,4)}, v{4 if fb else 1} offset:{q*32}")
            a("s_lshl_b32 s46, s32, 8")
            a(f"s_add_u32 s46, s46, {LNM}")
            a("v_lshlrev_b32 v1, 2, v2")
            a("v_add_u32 v1, s46, v1")
            for tb in range(2):
                a(f"ds_read2_b32 {vr(16+tb*2,2)}, v1 offset0:{tb*32} offset1:{tb*32+128}")
            a("s_waitcnt lgkmcnt(0)")
            for tb in range(2): a(f"v_mul_f32 v{17+tb*2}, s40, v{17+tb*2}")
            k = 0
            for fb in range(2):
                for tb in range(2):
                    for q in range(4):
                        r = ACC + (fb * 2 + tb) * 16 + q * 4
                        c = 128 + fb * 16 + q * 4
                        mr = vr(16 + tb * 2, 2)
                        for h in (0, 2):
                            a(f"v_pk_fma_f32 {vr(r+h,2)}, {vr(c+h,2)}, {mr}, {vr(r+h,2)} op_sel_hi:[1,0,1]")
                        for h in (0, 2):
                            a(f"v_pk_mul_f32 {vr(r+h,2)}, {vr(r+h,2)}, {mr} op_sel:[0,1] op_sel_hi:[1,1]")
                        t = 20 + (k % 8) * 2; k += 1
                        a(f"v_cvt_pk_bf16_f32 v{t}, v{r}, v{r+1}")
                        a(f"v_cvt_pk_bf16_f32 v{t+1}, v{r+2}, v{r+3}")
                        a(f"buffer_store_dwordx2 {vr(t,2)}, v{SO+fb*4+q}, s[20:23], s{42+tb} offen")
        else:
            a("v_lshlrev_b32 v1, 2, v2")
            a("v_add_u32 v1, s46, v1")
            a("v_xor_b32 v4, 128, v1")
            for fb in range(2):
                a(f"ds_read_b32 v{16+fb*2}, v{4 if fb else 1}")
            a("s_lshl_b32 s46, s32, 8")
            a(f"s_add_u32 s46, s46, {LNM}")
            a("v_lshlrev_b32 v1, 4, v3")
            a("v_add_u32 v1, s46, v1")
            for tb in range(2):
                for q in range(4):
                    a(f"ds_read_b128 {vr(128+tb*16+q*4,4)}, v1 offset:{tb*128+q*32}")
                    a(f"ds_read_b128 {vr(160+tb*16+q*4,4)}, v1 offset:{512+tb*128+q*32}")
            a("s_waitcnt lgkmcnt(0)")
            k = 0
            for fb in range(2):
                for tb in range(2):
                    for q in range(4):
                        r = ACC + (fb * 2 + tb) * 16 + q * 4
                        m = 128 + tb * 16 + q * 4
                        cs = vr(16 + fb * 2, 2)
                        for h in (0, 2):
                            a(f"v_pk_fma_f32 {vr(r+h,2)}, {vr(m+h,2)}, {cs}, {vr(r+h,2)} op_sel_hi:[1,0,1]")
                        for h in (0, 2):
                            a(f"v_pk_mul_f32 {vr(r+h,2)}, {vr(r+h,2)}, {vr(m+32+h,2)}")
                        t = 20 + (k % 8) * 2; k += 1
                        a(f"v_cvt_pk_bf16_f32 v{t}, v{r}, v{r+1}")
                        a(f"v_cvt_pk_bf16_f32 v{t+1}, v{r+2}, v{r+3}")
                        a(f"buffer_store_dwordx2 {vr(t,2)}, v{SO+fb}, s[20:23], s{42+tb} offen offset:{(q>>1)*640+(q&1)*320}")
        ts(a, 8)
        ts_flush(a, 0)
        a("s_endpgm")

    a.label(f"{name}_helper")
    a("s_sub_u32 s3, s3, 4")
    a("s_and_b32 s32, s3, 1")
    a("s_lshl_b32 s32, s32, 2")
    a("v_lshrrev_b32 v5, 4, v0")
    a("v_add_u32 v6, s32, v5")
    a("v_and_b32 v7, 7, v0")
    a("v_xor_b32 v6, v6, v7")
    a("v_lshlrev_b32 v6, 4, v6")
    a("v_lshrrev_b32 v7, 3, v0")
    a("s_lshl_b32 s33, s3, 3")
    a("v_add_u32 v7, s33, v7")
    a("v_mul_u32_u24 v7, 1280, v7")
    a("v_add_u32 v8, v7, v6")
    a("s_lshl_b32 s33, s3, 2")
    a("v_add_u32 v7, s33, v5")
    a("v_mul_u32_u24 v7, 3840, v7")
    a("v_bfe_u32 v6, v0, 2, 2")
    a("v_xor_b32 v6, v6, v5")
    a("v_lshl_add_u32 v7, v6, 6, v7")
    a("v_and_b32 v6, 3, v0")
    a("v_lshl_add_u32 v9, v6, 4, v7")
    a("s_mul_i32 s34, s30, 163840")
    a("s_lshl_b32 s35, s31, 8")
    a("s_lshl_b32 s36, s3, 10")
    a("s_waitcnt lgkmcnt(0)")
    srd(a, 12, 4, 0, SZ_X)
    srd(a, 16, 6, 0, D * 1920 * 2)
    def issue(c):
        st = (c & 3) * 16384
        for j in range(4):
            a(f"s_add_u32 m0, s36, {st + j*4096}")
            a(f"s_add_u32 s37, s34, {c*128 + j*40960}")
            a("buffer_load_dwordx4 v8, s[12:15], s37 offen lds")
            a(f"s_add_u32 m0, s36, {LB + st + j*4096}")
            a(f"s_add_u32 s38, s35, {(c*64 + j*16)*3840}")
            a("buffer_load_dwordx4 v9, s[16:19], s38 offen lds")
    for c in range(4): issue(c)
    a("s_lshl_b32 s33, s3, 12")
    a("v_lshlrev_b32 v5, 7, v2")
    a("v_add_u32 v5, s33, v5")
    for ks in range(4):
        a(f"v_or_b32 v6, {2*ks}, v3")
        a("v_xor_b32 v6, v6, v4")
        a(f"v_lshl_add_u32 v{10+ks}, v6, 4, v5")
    for i in range(4): a(f"v_mov_b32 v{32+i}, 0")
    a("s_mov_b32 s39, 0xffff0000")
    a("s_waitcnt vmcnt(24)")
    a("s_barrier")
    for c in range(10):
        if c >= 1 and c + 3 <= 9: issue(c + 3)
        st = (c & 3) * 16384
        for ks in range(4):
            a(f"ds_read_b128 {vr(16+ks*4,4)}, v{10+ks} offset:{st}")
        for ks in range(4):
            a(f"s_waitcnt lgkmcnt({3-ks})")
            for i in range(4):
                r = 16 + ks * 4 + i
                t = 36 + (i & 1) * 2
                a(f"v_lshlrev_b32 v{t}, 16, v{r}")
                a(f"v_and_b32 v{t+1}, s39, v{r}")
                a(f"v_add_f32 v32, v32, v{t}")
                a(f"v_add_f32 v33, v33, v{t+1}")
                a(f"v_fma_f32 v34, v{t}, v{t}, v34")
                a(f"v_fma_f32 v35, v{t+1}, v{t+1}, v35")
        if c < 9:
            a(f"s_waitcnt vmcnt({8*(min(c+3,9)-(c+1))})")
        a("s_barrier")
    a("v_add_f32 v32, v32, v33")
    a("v_add_f32 v34, v34, v35")
    swap_sum(a, 32, 36, 32)
    swap_sum(a, 34, 36, 32)
    ln_stats(a, 32, 34, 36)
    a("s_lshl_b32 s33, s3, 7")
    a(f"s_add_u32 s33, s33, {LNM}")
    a("v_lshlrev_b32 v5, 2, v2")
    a("v_add_u32 v5, s33, v5")
    a("ds_write2_b32 v5, v32, v34 offset0:0 offset1:128")
    a("s_waitcnt lgkmcnt(0)")
    a("s_barrier")
    ts_flush(a, 0)
    a("s_endpgm")

    a.label(f"{name}_colsum")
    a("s_sub_u32 s29, s29, 30")
    a("s_lshl_b32 s29, s29, 3")
    a("s_add_u32 s29, s29, s28")
    a("s_lshl_b32 s29, s29, 3")
    a("s_add_u32 s29, s29, s3")
    a(f"s_cmp_ge_u32 s29, {0 if OPT.get('nocs') else 108}")
    a(f"s_cbranch_scc1 {name}_end")
    a("s_waitcnt lgkmcnt(0)")
    a("s_cmp_ge_u32 s29, 54")
    a("s_cselect_b32 s12, s26, s24")
    a("s_cselect_b32 s13, s27, s25")
    a("s_cselect_b32 s30, 54, 0")
    a(f"s_cselect_b32 s31, {CS_UP}, 0")
    a(f"s_mov_b32 s14, {D*F*2}")
    a("s_mov_b32 s15, 0x00020000")
    a("s_sub_u32 s29, s29, s30")
    srd(a, 16, 8, WS_CS, 2 * CS_UP)
    a("v_lshrrev_b32 v1, 2, v0")
    a("v_mul_u32_u24 v1, 3456, v1")
    a("v_and_b32 v2, 3, v0")
    a("v_lshl_add_u32 v1, v2, 4, v1")
    a("s_lshl_b32 s32, s29, 6")
    for i in range(40):
        a(f"s_add_u32 s33, s32, {i*16*3456}")
        a(f"buffer_load_dwordx4 {vr(16+i*4,4)}, v1, s[12:15], s33 offen")
    for i in range(8): a(f"v_mov_b32 v{4+i}, 0")
    a("s_mov_b32 s39, 0xffff0000")
    for i in range(40):
        a(f"s_waitcnt vmcnt({39-i})")
        for j in range(4):
            r = 16 + i * 4 + j
            a(f"v_lshlrev_b32 v{12+(j&1)*2}, 16, v{r}")
            a(f"v_and_b32 v{13+(j&1)*2}, s39, v{r}")
            a(f"v_add_f32 v{4+2*j}, v{4+2*j}, v{12+(j&1)*2}")
            a(f"v_add_f32 v{5+2*j}, v{5+2*j}, v{13+(j&1)*2}")
    for sh in (4, 8):
        for i in range(8):
            a(f"v_add_f32_dpp v{4+i}, v{4+i}, v{4+i} row_ror:{sh} row_mask:0xf bank_mask:0xf")
    for wh in (16, 32):
        for i in range(8): swap_sum(a, 4 + i, 16 + i, wh)
    a("s_lshl_b32 s32, s29, 7")
    a("s_add_u32 s32, s32, s31")
    a("v_lshlrev_b32 v1, 5, v2")
    a("s_mov_b64 exec, 0xf")
    a("buffer_store_dwordx4 v[4:7], v1, s[16:19], s32 offen")
    a("buffer_store_dwordx4 v[8:11], v1, s[16:19], s32 offen offset:16")
    ts_flush(a, 0)
    a.label(f"{name}_end")
    a("s_endpgm")
    return dict(grid=256, block=512, lds=131072 + 2048, vgpr=192)

def k_attn(a, name):
    AK, AB, AV, QA, QB, NEG, SS, PP, OO, KA, KB, VV, SO, MX = 2, 3, 4, 8, 12, 16, 32, 64, 72, 88, 96, 100, 116, 120
    PD, PO, PV = 123, 124, 128
    PF = 119
    NPRO = OPT.get("npro", 4)
    ts_init(a)
    a(f"""
    s_cmp_ge_u32 s2, 256
    s_cbranch_scc1 {name}_end
    s_load_dwordx16 s[32:47], s[0:1], 16
    s_load_dwordx2 s[28:29], s[0:1], 0
    v_lshrrev_b32 v1, 6, v0
    v_and_b32 v0, 63, v0
    v_readfirstlane_b32 s3, v1
    v_readfirstlane_b32 s101, v1
    s_and_b32 s4, s2, 7
    s_lshl_b32 s4, s4, 2
    s_lshr_b32 s5, s2, 6
    s_add_u32 s4, s4, s5              ; head
    s_bfe_u32 s5, s2, 0x30003         ; qb
    s_mul_i32 s6, s4, 163840
    s_add_u32 s6, s6, {hex(WS_KV)}
    s_lshl_b32 s7, s4, 3
    s_add_u32 s7, s7, s5
    s_lshl_b32 s7, s7, 3
    s_add_u32 s7, s7, s3
    s_mul_i32 s7, s7, 1280
    v_lshlrev_b32 v{AK}, 4, v0
    v_and_b32 v5, 31, v0
    v_lshlrev_b32 v{AB}, 3, v5
    v_add_u32 v{AB}, 1024, v{AB}
    v_mov_b32 v{QB}, 0
    v_mov_b32 v{QB+1}, 0
    s_lshl_b32 m0, s3, 10
    s_mov_b32 s14, 163840
    s_mov_b32 s15, 0x00020000
    s_mov_b32 s18, {hex(SZ_X)}
    s_mov_b32 s19, 0x00020000
    s_waitcnt lgkmcnt(0)
    s_add_u32 s12, s46, s6
    s_addc_u32 s13, s47, 0
    """)
    def dma():
        a(f"buffer_load_dwordx4 v{AK}, s[12:15], m0 offen lds")
        a("s_add_u32 m0, m0, 8192")
    dma()
    a("s_mov_b32 s16, s46")
    a("s_mov_b32 s17, s47")
    a(f"buffer_load_dwordx4 {vr(QA,4)}, v{AK}, s[16:19], s7 offen")
    a("s_mov_b32 exec_hi, 0")
    a(f"buffer_load_dwordx2 {vr(QB,2)}, v{AB}, s[16:19], s7 offen")
    a("s_mov_b64 exec, -1")
    for j in range(1, NPRO): dma()
    a("s_mov_b32 s8, s46")
    a("s_mov_b32 s9, s47")
    srd(a, 20, 8, WS_O, SZ_X)
    a("v_lshrrev_b32 v6, 5, v0")
    a("v_mul_u32_u24 v7, 320, v6")
    a(f"v_lshl_add_u32 v{AV}, v5, 4, v7")
    a(f"v_add_u32 v{AV}, 1280, v{AV}")
    a("v_cmp_eq_u32 vcc, 20, v5")
    a("v_mov_b32 v7, 0x3f803f80")
    a(f"v_cndmask_b32 v{VV}, 0, v7, vcc")
    for i in range(1, 16): a(f"v_mov_b32 v{VV+i}, v{VV}")
    a("s_mov_b32 s24, 0x000fffff")
    a("s_mov_b32 s25, 0x000fffff")
    a("s_lshl_b32 s10, s5, 4")
    a("s_lshl_b32 s11, s3, 1")
    a("s_add_u32 s10, s10, s11")
    a("v_bfe_u32 v7, v0, 4, 1")
    a("v_add_u32 v7, s10, v7")
    a("v_mul_u32_u24 v7, 20480, v7")
    a("v_and_b32 v1, 15, v0")
    a("v_lshl_add_u32 v7, v1, 4, v7")
    a("s_mul_i32 s10, s4, 5")
    a("v_add_u32 v6, s10, v6")
    for k in range(3):
        if k: a("v_add_u32 v6, 2, v6")
        a("v_lshrrev_b32 v1, 3, v6")
        a(f"v_lshl_add_u32 v{SO+k}, v1, 10, v7")
        a("v_and_b32 v1, 3, v6")
        a(f"v_lshl_add_u32 v{SO+k}, v1, 8, v{SO+k}")
        a("v_bfe_u32 v1, v6, 2, 1")
        a(f"v_lshl_add_u32 v{SO+k}, v1, 3, v{SO+k}")
    a(f"v_mov_b32 v{PD}, v{AK}")
    srd(a, 88, 8, WS_WP, WP_UNITS * 1024)
    a("s_lshl_b32 s30, s2, 3")
    a("s_add_u32 s30, s30, s3")
    REG = [(0, 40, F * D * 2, 270, 10, 1280), (2160, 32, D * D * 2, 100, 10, 1280),
           (2960, 36, D * F * 2, 140, 14, 3456), (5200, 38, D * F * 2, 140, 14, 3456)]
    for sl in range(4):
        lo, hi = sl * 2048, sl * 2048 + 2047
        regs = [r for i, r in enumerate(REG) if r[0] <= hi and (i == 3 or REG[i + 1][0] > lo)]
        d = 48 + 4 * sl
        def params(r): return [(d, f"s{r[1]}"), (d + 1, f"s{r[1]+1}"), (d + 2, hex(r[2])), (4, str(lo - r[0])), (5, str(r[3])), (6, str(-(-(1 << 20) // r[3]))),
                               (7, str(-(-(1 << 19) // r[4]))), (10, str(r[5] - r[4] * 16)), (11, str(r[4] * 16))]
        cur = params(regs[0])
        for dst, val in cur: a(f"s_mov_b32 s{dst}, {val}")
        for r in regs[1:]:
            a(f"s_cmp_ge_u32 s30, {r[0] - lo}")
            for (dst, val), (_, old) in zip(params(r), cur):
                a(f"s_cselect_b32 s{dst}, {val}, s{dst}")
        a(f"s_mov_b32 s{d+3}, 0x00020000")
        a("s_add_u32 s4, s4, s30")
        a("s_mul_i32 s6, s6, s4")
        a("s_lshr_b32 s6, s6, 20")
        a("s_mul_i32 s5, s5, s6")
        a("s_sub_u32 s4, s4, s5")
        a("s_lshl_b32 s4, s4, 6")
        a(f"s_mul_i32 s{92+sl}, s6, s11")
        a("v_add_u32 v1, s4, v0")
        a("v_mul_u32_u24 v5, s7, v1")
        a("v_lshrrev_b32 v5, 19, v5")
        a("v_mul_u32_u24 v5, s10, v5")
        a(f"v_lshl_add_u32 v{PO+sl}, v1, 4, v5")
    a("s_lshl_b32 s30, s30, 10")
    a("s_lshr_b32 s4, s2, 3")
    a("s_lshl_b32 s4, s4, 3")
    a("s_add_u32 s4, s4, s3")
    a("s_and_b32 s5, s2, 1")
    a(f"s_mul_i32 s5, s5, {1120*1024}")
    a(f"s_add_u32 s6, s5, {(2960-800)*1024}")
    a(f"s_add_u32 s7, s5, {(5200-1920)*1024}")
    a(f"s_mov_b32 s31, {2160*1024}")
    a("s_cmp_ge_u32 s4, 100")
    a("s_cselect_b32 s31, s6, s31")
    a("s_cmp_ge_u32 s4, 240")
    a("s_cselect_b32 s31, s7, s31")
    a("s_lshl_b32 s10, s4, 13")
    a("s_add_u32 s31, s31, s10")
    a("s_add_u32 s7, s7, s10")
    a(f"s_add_u32 s7, s7, {256*8192}")
    a("s_cmp_lt_u32 s4, 124")
    a(f"s_cselect_b32 s36, s7, {hex(WP_UNITS*1024)}")
    a("s_and_b32 s5, s2, 7")
    a("s_mul_i32 s5, s5, 327680")
    a("s_add_u32 s5, s5, s10")
    a(f"s_sub_u32 s5, s5, {216*8192}")
    a("s_cmp_ge_u32 s4, 216")
    a(f"s_cselect_b32 s37, s5, {hex(SZ_X)}")
    srd(a, 32, 28, 0, SZ_X)
    a(f"v_lshlrev_b32 v{PF}, 7, v0")
    a("s_mov_b32 s26, 1")
    a(f"s_mov_b32 s38, {OPT.get('pf_it', 12)}")
    a(f"s_mov_b32 s27, {OPT.get('pk_ld', 3)}")
    a(f"s_mov_b32 s28, {OPT.get('pk_st', 6)}")
    ts(a, 1)
    a(f"s_waitcnt vmcnt({NPRO-4})")
    a("s_barrier")
    ts(a, 2)
    a.label(f"{name}_maxpass")
    a(f"v_mov_b32 v{MX}, 0xff800000")
    a(f"v_mov_b32 v{MX+1}, v{AK}")
    a(f"v_mov_b32 v{MX+2}, v{AB}")
    a("s_mov_b32 s29, s26")
    a.label(f"{name}_maxloop")
    a(f"ds_read_b64 {vr(KB,2)}, v{MX+2}")
    a(f"ds_read_b128 {vr(KA,4)}, v{MX+1}")
    a(f"v_add_u32 v{MX+1}, 2560, v{MX+1}")
    a(f"v_add_u32 v{MX+2}, 2560, v{MX+2}")
    a("s_waitcnt lgkmcnt(0)")
    a(f"v_mfma_f32_32x32x8bf16_1k {vr(SS,16)}, {vr(KB,2)}, {vr(QB,2)}, 0")
    a(f"v_mfma_f32_32x32x16_bf16 {vr(SS,16)}, {vr(KA,4)}, {vr(QA,4)}, {vr(SS,16)}")
    for i in range(8): a(f"v_max3_f32 v{MX}, v{SS+2*i}, v{SS+2*i+1}, v{MX}")
    a("s_sub_u32 s29, s29, 1")
    a("s_cmp_lg_u32 s29, 0")
    a(f"s_cbranch_scc1 {name}_maxloop")
    a(f"ds_read_b64 {vr(KB,2)}, v{AB}")
    a(f"ds_read_b128 {vr(KA,4)}, v{AK}")
    a(f"ds_read_b64 {vr(KB+2,2)}, v{AB} offset:2560")
    a(f"ds_read_b128 {vr(KA+4,4)}, v{AK} offset:2560")
    a("s_mov_b64 exec, s[24:25]")
    a(f"ds_read_b128 {vr(VV,4)}, v{AV}")
    a(f"ds_read_b128 {vr(VV+4,4)}, v{AV} offset:640")
    a("s_mov_b64 exec, -1")
    a(f"v_mov_b32 v{MX+1}, v{MX}")
    a(f"v_permlane32_swap_b32 v{MX}, v{MX+1}")
    a(f"v_max_f32 v{MX}, v{MX}, v{MX+1}")
    for i in range(16): a(f"v_sub_f32 v{NEG+i}, 0, v{MX}")
    for i in range(16): a(f"v_mov_b32 v{OO+i}, 0")
    for i in range(4): a(f"v_mov_b32 v{PP+4+i}, 0")
    a("s_waitcnt lgkmcnt(0)")
    a(f"v_mfma_f32_32x32x8bf16_1k {vr(SS,16)}, {vr(KB,2)}, {vr(QB,2)}, {vr(NEG,16)}")
    a(f"v_mfma_f32_32x32x16_bf16 {vr(SS,16)}, {vr(KA,4)}, {vr(QA,4)}, {vr(SS,16)}")
    a("s_mov_b32 s29, 0")
    a("s_cmp_ge_u32 s3, 4")
    a("s_cselect_b64 vcc, -1, 0")
    a("s_setprio 1")
    a("s_nop 5")
    ts(a, 3)

    PLO = OPT.get("plo", 1)
    def prio(p):
        if not OPT.get("prio", 1): return
        l = a.newlabel(f"{name}_p")
        a(f"s_cbranch_vccnz {l}")
        a(f"s_setprio {p}")
        a.label(l)
    def step(u, last, ndma=0):
        c, n = u & 1, (u + 1) & 1
        s = SS + 16 * c
        o = u * 2560
        nxt = last is None or last >= 1
        nx2 = last is None or last >= 2
        ex = lambda i: a(f"v_exp_f32{'_e64' if i == 15 else ''} v{s+i}, v{s+i}")
        cv = lambda i: a(f"v_cvt_pk_bf16_f32 v{PP+i}, v{s+2*i}, v{s+2*i+1}")
        def slot(k):
            if (u & 3) == 3 and k == PLO: prio(0)
            if k >= 1 and k <= ndma: dma()
        if (u & 3) == 0: prio(2)
        slot(0)
        ex(0)
        a("s_waitcnt lgkmcnt(0)")
        if nxt: a(f"v_mfma_f32_32x32x8bf16_1k {vr(SS+16*n,16)}, {vr(KB+2*n,2)}, {vr(QB,2)}, {vr(NEG,16)}")
        if nx2:
            a(f"ds_read_b64 {vr(KB+2*c,2)}, v{AB} offset:{o+5120}")
            a(f"ds_read_b128 {vr(KA+4*c,4)}, v{AK} offset:{o+5120}")
        ex(1); ex(2)
        a(f"v_mfma_f32_32x32x16_bf16 {vr(OO,16)}, {vr(VV+8*n+4,4)}, {vr(PP+4,4)}, {vr(OO,16)}")
        slot(1)
        ex(3)
        if nxt:
            a("s_mov_b64 exec, s[24:25]")
            a(f"ds_read_b128 {vr(VV+8*n,4)}, v{AV} offset:{o+2560}")
            a(f"ds_read_b128 {vr(VV+8*n+4,4)}, v{AV} offset:{o+2560+640}")
            a("s_mov_b64 exec, -1")
        ex(4); ex(5); ex(6)
        if nxt: a(f"v_mfma_f32_32x32x16_bf16 {vr(SS+16*n,16)}, {vr(KA+4*n,4)}, {vr(QA,4)}, {vr(SS+16*n,16)}")
        slot(2)
        ex(7); ex(8)
        cv(0); cv(1); cv(2); cv(3)
        ex(9); ex(10)
        a(f"v_mfma_f32_32x32x16_bf16 {vr(OO,16)}, {vr(VV+8*c,4)}, {vr(PP,4)}, {vr(OO,16)}")
        slot(3)
        for i in range(11, 16): ex(i)
        cv(4); cv(5); cv(6); cv(7)

    def adv(n):
        for r in (AK, AB, AV): a(f"v_add_u32 v{r}, {n}, v{r}")

    a("s_cmp_lg_u32 s26, 1")
    a(f"s_cbranch_scc1 {name}_loop")
    a(".p2align 3")
    left = 20 - NPRO
    for u in range(8):
        k = min(left, OPT.get("dps", 3)); left -= k
        step(u, None, k)
    assert left == 0
    adv(20480)
    a("s_mov_b32 s29, 2")
    ts(a, 4)
    a("s_waitcnt vmcnt(0)")
    a("s_barrier")
    ts(a, 5)
    a(".p2align 3")
    a.label(f"{name}_loop")
    for u in range(4): step(u, None)
    adv(10240)
    a("s_add_u32 s29, s29, 1")
    a("s_cmp_eq_u32 s29, s27")
    a(f"s_cbranch_scc1 {name}_pld")
    a("s_cmp_eq_u32 s29, s28")
    a(f"s_cbranch_scc1 {name}_pst")
    a("s_cmp_eq_u32 s29, s38")
    a(f"s_cbranch_scc1 {name}_pf")
    a("s_cmp_lt_u32 s29, 15")
    a(f"s_cbranch_scc1 {name}_loop")
    a(".p2align 3")
    for u in range(4): step(u, 3 - u)
    a(f"v_mfma_f32_32x32x16_bf16 {vr(OO,16)}, {vr(VV+12,4)}, {vr(PP+4,4)}, {vr(OO,16)}")
    a(f"v_mov_b32 v{MX}, v{OO+8}")
    a(f"v_mov_b32 v{MX+1}, v{OO+8}")
    a(f"v_permlane32_swap_b32 v{MX}, v{MX+1}")
    a(f"v_cmp_gt_f32 vcc, {f32(2.0**30)}, v{MX+1}")
    a("s_cmp_eq_u64 vcc, -1")
    a(f"s_cbranch_scc1 {name}_done")
    a("s_cmp_eq_u32 s26, 64")
    a(f"s_cbranch_scc1 {name}_done")
    a("s_mov_b32 s26, 64")
    a("s_mov_b32 s27, -1")
    a("s_mov_b32 s28, -1")
    a("s_mov_b32 s38, -1")
    a(f"v_subrev_u32 v{AK}, {15*10240}, v{AK}")
    a(f"v_subrev_u32 v{AB}, {15*10240}, v{AB}")
    a(f"v_subrev_u32 v{AV}, {15*10240}, v{AV}")
    a(f"s_branch {name}_maxpass")
    a.label(f"{name}_pld")
    for sl in range(4):
        a(f"buffer_load_dwordx4 {vr(PV+4*sl,4)}, v{PO+sl}, s[{48+4*sl}:{51+4*sl}], s{92+sl} offen")
    a(f"s_branch {name}_loop")
    a.label(f"{name}_pst")
    ts(a, 6)
    a("s_waitcnt vmcnt(0)")
    ts(a, 7)
    for sl in range(4):
        a(f"buffer_store_dwordx4 {vr(PV+4*sl,4)}, v{PD}, s[88:91], s30 offen{OPT.get('pk_fl', ' sc1')}")
        if sl < 3: a(f"s_add_u32 s30, s30, {2048*1024}")
    a(f"s_branch {name}_loop")
    a.label(f"{name}_pf")
    a(f"buffer_load_dword v{PV}, v{PF}, s[88:91], s31 offen")
    a(f"buffer_load_dword v{PV+1}, v{PF}, s[88:91], s36 offen")
    a(f"buffer_load_dword v{PV+2}, v{PF}, s[32:35], s37 offen")
    a(f"s_branch {name}_loop")
    a.label(f"{name}_done")
    ts(a, 8)
    a(f"v_rcp_f32 v{MX}, v{MX+1}")
    for k in range(3):
        for i in range(4): a(f"v_mul_f32 v{OO+4*k+i}, v{OO+4*k+i}, v{MX}")
        a(f"v_cvt_pk_bf16_f32 v{PP+2*k}, v{OO+4*k}, v{OO+4*k+1}")
        a(f"v_cvt_pk_bf16_f32 v{PP+2*k+1}, v{OO+4*k+2}, v{OO+4*k+3}")
        if k == 2: a("s_mov_b32 exec_hi, 0")
        a(f"buffer_store_dwordx2 {vr(PP+2*k,2)}, v{SO+k}, s[20:23], 0 offen")
    ts_flush(a, 1)
    a.label(f"{name}_end")
    a("s_endpgm")
    return dict(grid=256, block=512, lds=163840, vgpr=144)

def k_g24(a, name, which):
    g4 = which == 4
    NKS = 54 if g4 else 20
    AKS = ACT_KS if g4 else 20
    NG = (NKS + 3) // 4
    RING = OPT.get('g4_ring', 5) if g4 else 5; DEPTH = OPT.get('g4_depth', 3) if g4 else 4
    NA = OPT.get('g4_na', 8) if g4 else OPT.get('g2_na', 20)
    WB, WF, ACC, RES, AF = 4, 8, 48, 68, 80
    kidx = 4 if g4 else 2
    ts_init(a)
    a(f"""
    s_cmp_ge_u32 s2, 256
    s_cbranch_scc1 {name}_end
    s_load_dwordx2 s[4:5], s[0:1], {48 if g4 else 16}
    s_load_dwordx2 s[6:7], s[0:1], {56 if g4 else 0}
    s_load_dwordx2 s[8:9], s[0:1], 72
    v_lshrrev_b32 v1, 6, v0
    v_and_b32 v0, 63, v0
    v_readfirstlane_b32 s3, v1
    v_readfirstlane_b32 s101, v1
    s_and_b32 s28, s2, 7
    s_lshl_b32 s28, s28, 2
    s_bfe_u32 s29, s2, 0x20003
    s_add_u32 s28, s28, s29
    s_lshr_b32 s29, s2, 5             ; n tile
    s_cmp_ge_u32 s3, 4
    s_cbranch_scc1 {name}_helper
    s_setprio 2
    v_lshlrev_b32 v2, 4, v0
    s_lshl_b32 s30, s28, 2
    s_add_u32 s30, s30, s3
    s_mul_i32 s31, s30, {AKS*1024}
    s_waitcnt lgkmcnt(0)
    """)
    srd(a, 12, 8, WS_ACT if g4 else WS_O, 128 * AKS * 1024)
    vm = []
    def aload(s):
        if s & 3 == 0: a(f"s_add_u32 s32, s31, {s*1024}")
        a(f"buffer_load_dwordx4 {vr(AF+(s%NA)*4,4)}, v2, s[12:15], s32 offen offset:{(s&3)*1024}")
        vm.append(s)
    NPRE, RAMP = (OPT.get("g4_pre", 6), OPT.get("g4_ramp", 2)) if g4 else (OPT.get("g2_pre", 6), OPT.get("g2_ramp", 2))
    for s_ in range(NPRE): aload(s_)
    a("v_and_b32 v1, 15, v0")
    a("v_lshrrev_b32 v3, 4, v0")
    a("v_mul_u32_u24 v78, 1280, v1")
    a("v_lshl_add_u32 v78, v3, 3, v78")
    a("s_mul_i32 s33, s30, 20480")
    a("s_mul_i32 s34, s29, 160")
    a("s_add_u32 s33, s33, s34")
    a("v_lshlrev_b32 v79, 4, v1")
    a("v_lshrrev_b32 v1, 1, v3")
    a("v_lshl_add_u32 v79, v1, 9, v79")
    a("v_and_b32 v1, 1, v3")
    a("v_lshl_add_u32 v79, v1, 3, v79")
    a("s_lshr_b32 s34, s30, 1")
    a("s_mul_i32 s34, s34, 40")
    a("s_mul_i32 s35, s29, 5")
    a("s_add_u32 s34, s34, s35")
    a("s_lshl_b32 s34, s34, 10")
    a("s_and_b32 s35, s30, 1")
    a("s_lshl_b32 s35, s35, 8")
    a("s_add_u32 s34, s34, s35")
    a("s_add_u32 s35, s34, 4096")
    srd(a, 16, 6, 0, SZ_X)
    srd(a, 20, 8, WS_H, SZ_X)
    def rload(b):
        if g4: a(f"buffer_load_dwordx2 {vr(RES+2*b,2)}, v79, s[20:23], s{35 if b == 4 else 34} offen offset:{(b&3)*1024}")
        else:  a(f"buffer_load_dwordx2 {vr(RES+2*b,2)}, v78, s[16:19], s33 offen offset:{b*32}")
        vm.append(f"r{b}")
    a("v_lshrrev_b32 v1, 2, v0")
    a(f"v_mul_u32_u24 v{WB}, 160, v1")
    a("v_and_b32 v1, 3, v0")
    a(f"v_lshl_add_u32 v{WB}, v1, 3, v{WB}")
    a(f"v_add_u32 v{WB+1}, 61440, v{WB}")
    a(f"v_add_u32 v{WB+2}, 122880, v{WB}")
    for i in range(20): a(f"v_mov_b32 v{ACC+i}, 0")
    def wread(s, b, h):
        pos = s % (RING * 4)
        a(f"ds_read_b64_tr_b16 {vr(WF+(s&1)*20+b*4+2*h,2)}, v{WB+pos//12} offset:{(pos%12)*5120+b*32+h*2560}")
    ts(a, 1)
    a("s_barrier")
    ts(a, 2)
    for b in range(5): wread(0, b, 0); wread(0, b, 1)
    issued, nres = NPRE, 0
    for s_ in range(NKS):
        last_in_group = (s_ & 3) == 3 or s_ == NKS - 1
        a(f"s_waitcnt vmcnt({len(vm) - 1 - vm.index(s_)}) lgkmcnt({0 if last_in_group else 8})")
        if last_in_group:
            a("s_barrier")
            if PROF and s_ in ((3, 7, 11, 15, 19) if not g4 else (3, 15, 27, 39, 53)): ts(a, 3 + (s_ // (12 if g4 else 4)))
        for b in range(5):
            if b and not last_in_group: a(f"s_waitcnt lgkmcnt(8)")
            a(f"v_mfma_f32_16x16x32_bf16 {vr(ACC+4*b,4)}, {vr(WF+(s_&1)*20+b*4,4)}, {vr(AF+(s_%NA)*4,4)}, {vr(ACC+4*b,4)}")
            if s_ + 1 < NKS: wread(s_ + 1, b, 0); wread(s_ + 1, b, 1)
            if b < RAMP:
                if issued < NKS:
                    if issued < s_ + NA: aload(issued); issued += 1
                elif nres < 5: rload(nres); nres += 1
    assert nres == 5
    a("s_waitcnt vmcnt(0)")
    ts(a, 8)
    a("s_mov_b32 s39, 0xffff0000")
    if not g4:
        for i in range(4): a(f"v_mov_b32 v{8+i}, 0")
    for b in range(5):
        r, x, t = ACC + 4 * b, RES + 2 * b, 12 + (b & 1) * 4
        for h in range(2):
            a(f"v_lshlrev_b32 v{t+2*h}, 16, v{x+h}")
            a(f"v_and_b32 v{t+2*h+1}, s39, v{x+h}")
        for h in range(2):
            a(f"v_pk_add_f32 {vr(r+2*h,2)}, {vr(r+2*h,2)}, {vr(t+2*h,2)}")
        for h in range(2):
            a(f"v_cvt_pk_bf16_f32 v{x+h}, v{r+2*h}, v{r+2*h+1}")
        if g4:
            a(f"buffer_store_dwordx2 {vr(x,2)}, v78, s[16:19], s33 offen offset:{b*32}")
        else:
            a(f"buffer_store_dwordx2 {vr(x,2)}, v79, s[20:23], s{35 if b == 4 else 34} offen offset:{(b&3)*1024}")
            for h in range(2):
                a(f"v_lshlrev_b32 v{t+2*h}, 16, v{x+h}")
                a(f"v_and_b32 v{t+2*h+1}, s39, v{x+h}")
            for h in range(2):
                a(f"v_pk_add_f32 v[8:9], v[8:9], {vr(t+2*h,2)}")
                a(f"v_pk_fma_f32 v[10:11], {vr(t+2*h,2)}, {vr(t+2*h,2)}, v[10:11]")
    if not g4:
        a("v_add_f32 v8, v8, v9")
        a("v_add_f32 v9, v10, v11")
        for wh in (16, 32):
            a("v_mov_b32 v10, v8")
            a("v_mov_b32 v11, v9")
            a(f"v_permlane{wh}_swap_b32 v8, v10")
            a(f"v_permlane{wh}_swap_b32 v9, v11")
            a("v_pk_add_f32 v[8:9], v[8:9], v[10:11]")
        srd(a, 24, 8, WS_ST, 8 * S * 8)
        a("s_lshl_b32 s36, s29, 14")
        a("s_lshl_b32 s37, s30, 7")
        a("s_add_u32 s36, s36, s37")
        a("v_lshlrev_b32 v1, 3, v0")
        a("s_mov_b64 exec, 0xffff")
        a("buffer_store_dwordx2 v[8:9], v1, s[24:27], s36 offen")
    ts_flush(a, kidx)
    a("s_endpgm")
    a.label(f"{name}_helper")
    if OPT.get("hprio", 0): a(f"s_setprio {OPT['hprio']}")
    a("s_sub_u32 s3, s3, 4")
    a("v_lshlrev_b32 v2, 4, v0")
    a(f"s_mul_i32 s30, s29, {NKS*5120}")
    a("s_mul_i32 s31, s3, 5120")
    a("s_add_u32 s30, s30, s31")
    a("s_waitcnt lgkmcnt(0)")
    ts(a, 1)
    srd(a, 12, 8, WS_WDP if g4 else WS_WOP, 8 * NKS * 5120)
    def gissue(g):
        a(f"s_add_u32 s32, s30, {g*20480}")
        a(f"s_add_u32 m0, s31, {(g%RING)*20480}")
        for p_ in range(4):
            a(f"buffer_load_dwordx4 v2, s[12:15], s32 offen offset:{p_*1024} lds")
        a(f"s_add_u32 s32, s32, 4096")
        a(f"s_add_u32 m0, m0, 4096")
        a(f"buffer_load_dwordx4 v2, s[12:15], s32 offen lds")
    gissue(0); gissue(1)
    ts(a, 2)
    a("s_waitcnt vmcnt(5)")
    ts(a, 3)
    a("s_barrier")
    ts(a, 4)
    nxt = 2
    for g in range(NG):
        lim = min(NG, g + RING)
        while nxt < lim and nxt <= g + DEPTH:
            gissue(nxt); nxt += 1
        if g + 1 < NG: a(f"s_waitcnt vmcnt({min(63, 5*(nxt-1-(g+1)))})")
        a("s_barrier")
    ts_flush(a, kidx)
    a.label(f"{name}_end")
    a("s_endpgm")
    return dict(grid=256, block=512, lds=RING * 20480, vgpr=AF + NA * 4)

def k_g3(a, name):
    STG = 28672 + 256
    UPO = 14336 + 128
    RING, DEPTH, NA = 5, 3, 16
    LCS = RING * STG
    WB, WF, ACC, AF = 4, 8, 64, 176
    ts_init(a)
    a(f"""
    s_cmp_ge_u32 s2, 256
    s_cbranch_scc1 {name}_end
    s_load_dwordx4 s[4:7], s[0:1], 32
    s_load_dwordx2 s[8:9], s[0:1], 72
    v_lshrrev_b32 v1, 6, v0
    v_and_b32 v0, 63, v0
    v_readfirstlane_b32 s3, v1
    v_readfirstlane_b32 s101, v1
    s_bfe_u32 s28, s2, {'0x20001' if OPT.get('g3map', 1) else '0x20000'}
    s_lshl_b32 s28, s28, 2
    s_bfe_u32 s29, s2, 0x20003
    s_add_u32 s28, s28, s29
    s_bfe_u32 s29, s2, {'0x10000' if OPT.get('g3map', 1) else '0x10002'}
    s_lshl_b32 s29, s29, 3
    s_lshr_b32 s30, s2, 5
    s_add_u32 s29, s29, s30
    s_cmp_ge_u32 s3, 4
    s_cbranch_scc1 {name}_helper
    s_setprio 2
    v_lshlrev_b32 v2, 4, v0
    s_lshl_b32 s30, s28, 2
    s_add_u32 s30, s30, s3
    s_mul_i32 s31, s30, 40960
    s_waitcnt lgkmcnt(0)
    """)
    srd(a, 12, 8, WS_H, SZ_X)
    vm = []
    def aload(s):
        if s & 3 == 0: a(f"s_add_u32 s32, s31, {s*1024}")
        a(f"buffer_load_dwordx4 {vr(AF+(s%NA)*4,4)}, v2, s[12:15], s32 offen offset:{(s&3)*1024}")
        vm.append(s)
    NPRE, RAMP = OPT.get("g3_pre", 6), OPT.get("g3_ramp", 3)
    for s_ in range(NPRE): aload(s_)
    srd(a, 16, 8, WS_ST, 8 * S * 8)
    a("v_and_b32 v1, 31, v0")
    a("v_lshrrev_b32 v3, 5, v0")
    a("v_lshlrev_b32 v241, 3, v1")
    a("v_lshl_add_u32 v241, v3, 16, v241")
    a("s_lshl_b32 s33, s30, 8")
    def sload(i):
        a(f"buffer_load_dwordx2 {vr(242+2*i,2)}, v241, s[16:19], s33 offen")
        if i < 3: a("s_add_u32 s33, s33, 16384")
        vm.append(f"s{i}")
    a("v_bfe_u32 v240, v0, 2, 2")
    a("v_lshl_add_u32 v240, v3, 3, v240")
    a(f"v_mul_u32_u24 v{WB}, 224, v240")
    a("v_bfe_u32 v240, v0, 4, 1")
    a(f"v_mul_u32_u24 v240, {UPO}, v240")
    a(f"v_add_u32 v{WB}, v{WB}, v240")
    a("v_and_b32 v240, 3, v0")
    a(f"v_lshl_add_u32 v{WB}, v240, 3, v{WB}")
    a(f"v_add_u32 v{WB+1}, {2*STG}, v{WB}")
    a(f"v_add_u32 v{WB+2}, {4*STG}, v{WB}")
    for i in range(112): a(f"v_mov_b32 v{ACC+i}, 0")
    srd(a, 20, 8, WS_ACT, 128 * ACT_KS * 1024)
    a("v_bfe_u32 v240, v0, 4, 1")
    a(f"v_mul_u32_u24 v250, {ACT_KS*1024}, v240")
    a("v_and_b32 v240, 15, v0")
    a("v_lshl_add_u32 v250, v240, 4, v250")
    a("v_lshl_add_u32 v250, v3, 8, v250")
    a(f"s_mul_i32 s34, s30, {2*ACT_KS*1024}")
    a("s_mul_i32 s35, s29, 7")
    a("s_lshr_b32 s35, s35, 1")
    a("s_lshl_b32 s35, s35, 10")
    a("s_add_u32 s34, s34, s35")
    def wread(s, b, h):
        st = (s >> 2) % RING
        a(f"ds_read_b64_tr_b16 {vr(WF+(s&1)*28+b*4+2*h,2)}, v{WB+st//2} offset:{(st&1)*STG+(s&3)*3584+b*32+h*896}")
    ts(a, 1)
    a("s_barrier")
    ts(a, 2)
    for b in range(7): wread(0, b, 0); wread(0, b, 1)
    issued = NPRE
    for s_ in range(40):
        lig = (s_ & 3) == 3
        a(f"s_waitcnt vmcnt({len(vm) - 1 - vm.index(s_)}) lgkmcnt(12)")
        for b in range(7):
            if lig and b == 3:
                a("s_waitcnt lgkmcnt(0)")
                a("s_barrier")
                if PROF and s_ in (3, 11, 19, 27, 39): ts(a, 3 + min(4, s_ // 8))
            elif b and not (lig and b > 3):
                a(f"s_waitcnt lgkmcnt({12 - 2*b if lig else 12})")
            a(f"v_mfma_f32_32x32x16_bf16 {vr(ACC+16*b,16)}, {vr(WF+(s_&1)*28+b*4,4)}, {vr(AF+(s_%NA)*4,4)}, {vr(ACC+16*b,16)}")
            if s_ + 1 < 40:
                if not lig: wread(s_ + 1, b, 0); wread(s_ + 1, b, 1)
                elif b >= 3:
                    for bb in {3: (0, 1), 4: (2, 3), 5: (4, 5), 6: (6,)}[b]: wread(s_ + 1, bb, 0); wread(s_ + 1, bb, 1)
            if b in (1, 4, 6)[:RAMP] and issued < min(40, s_ + NA):
                aload(issued); issued += 1
            if s_ == 12 and b in (2, 3, 4, 5): sload(b - 2)
        if s_ == 30:
            for i in (244, 246, 248):
                a(f"v_add_f32 v242, v242, v{i}")
                a(f"v_add_f32 v243, v243, v{i+1}")
            swap_sum(a, 242, 244, 32)
            swap_sum(a, 243, 244, 32)
            ln_stats(a, 242, 243, 244)
            a("v_mul_f32 v243, v243, v243")
    ts(a, 8)
    a("v_lshlrev_b32 v1, 4, v3")
    a(f"v_add_u32 v1, {LCS}, v1")
    def csread(b):
        d = 8 + (b % 3) * 16
        for u in range(2):
            for q in range(2):
                a(f"ds_read_b128 {vr(d+u*8+q*4,4)}, v1 offset:{u*448+b*64+q*32}")
    def blk(b):
        d = 8 + (b % 3) * 16
        r = ACC + 16 * b
        for i in range(0, 16, 2):
            a(f"v_pk_fma_f32 {vr(r+i,2)}, {vr(d+i,2)}, v[242:243], {vr(r+i,2)} op_sel_hi:[1,0,1]")
        for i in range(8): a(f"v_max_f32 v{r+i}, 0, v{r+i}")
        for i in range(0, 8, 2):
            a(f"v_pk_mul_f32 {vr(r+8+i,2)}, {vr(r+8+i,2)}, v[242:243] op_sel:[0,1] op_sel_hi:[1,1]")
        for i in range(0, 8, 2):
            a(f"v_pk_mul_f32 {vr(r+i,2)}, {vr(r+i,2)}, {vr(r+8+i,2)}")
    def body(odd):
        csread(0); csread(1)
        for b in range(7):
            if b + 2 < 7: csread(b + 2)
            a(f"s_waitcnt lgkmcnt({4*min(2, 6-b)})")
            blk(b)
            r = ACC + 16 * b
            B = b + odd
            o = 176 + (B >> 1) * 8
            for q in range(2):
                for i in range(2):
                    a(f"v_cvt_pk_bf16_f32 v{o+q*4+(B&1)*2+i}, v{r+q*4+2*i}, v{r+q*4+2*i+1}")
            for q in range(2):
                off = (B >> 1) * 1024 + q * 512
                if B & 1 and b > 0:
                    a(f"buffer_store_dwordx4 {vr(o+q*4,4)}, v250, s[20:23], s34 offen offset:{off}")
                elif B & 1:
                    a(f"buffer_store_dwordx2 {vr(o+q*4+2,2)}, v250, s[20:23], s34 offen offset:{off+8}")
                elif b == 6:
                    a(f"buffer_store_dwordx2 {vr(o+q*4,2)}, v250, s[20:23], s34 offen offset:{off}")
    a("s_bitcmp1_b32 s29, 0")
    a(f"s_cbranch_scc1 {name}_odd")
    body(0)
    ts_flush(a, 3)
    a("s_endpgm")
    a.label(f"{name}_odd")
    body(1)
    ts_flush(a, 3)
    a("s_endpgm")
    a.label(f"{name}_helper")
    if OPT.get("hprio", 0): a(f"s_setprio {OPT['hprio']}")
    a("s_sub_u32 s3, s3, 4")
    a("v_lshlrev_b32 v8, 4, v0")
    a("s_and_b32 s32, s3, 1")
    a("s_mul_i32 s31, s32, 7168")
    a(f"s_mul_i32 s30, s29, {640*224}")
    a("s_add_u32 s30, s30, s31")
    a("s_cmp_ge_u32 s3, 2")
    a(f"s_cselect_b32 s33, {UPO}, 0")
    a("s_add_u32 s31, s31, s33")
    a("s_cmp_ge_u32 s3, 2")
    a(f"s_cselect_b32 s33, {16*640*224}, 0")
    a("s_add_u32 s30, s30, s33")
    a("s_waitcnt lgkmcnt(0)")
    ts(a, 1)
    srd(a, 12, 8, WS_WGP, 32 * 640 * 224)
    def gissue(g):
        a(f"s_add_u32 s32, s30, {g*14336}")
        a(f"s_add_u32 m0, s31, {(g%RING)*STG}")
        for p_ in range(7):
            if p_ == 4:
                a(f"s_add_u32 s32, s32, 4096")
                a(f"s_add_u32 m0, m0, 4096")
            a(f"buffer_load_dwordx4 v8, s[12:15], s32 offen offset:{(p_&3)*1024} lds")
    gissue(0)
    srd(a, 16, 8, WS_CS, 2 * CS_UP)
    a("s_mul_i32 s34, s29, 448")
    a("s_and_b32 s35, s3, 1")
    a("s_mul_i32 s35, s35, 224")
    a("s_add_u32 s34, s34, s35")
    a("s_cmp_ge_u32 s3, 2")
    a(f"s_cselect_b32 s36, {CS_UP}, 0")
    a("s_add_u32 s34, s34, s36")
    a("v_lshlrev_b32 v2, 2, v0")
    a("buffer_load_dword v16, v2, s[16:19], s34 offen")
    gissue(1)
    a("s_mul_i32 s35, s3, 224")
    a(f"s_add_u32 s35, s35, {LCS}")
    a("v_add_u32 v2, s35, v2")
    ts(a, 2)
    a("s_waitcnt vmcnt(7)")
    ts(a, 3)
    a("s_mov_b32 exec_hi, 0xffffff")
    a("ds_write_b32 v2, v16")
    a("s_mov_b32 exec_hi, -1")
    a("s_waitcnt lgkmcnt(0)")
    a("s_barrier")
    ts(a, 4)
    nxt = 2
    srd(a, 20, 8, WS_WDP, 2160 * 1024)
    a("v_lshlrev_b32 v9, 7, v0")
    a("s_lshr_b32 s36, s2, 3")
    a("s_lshl_b32 s36, s36, 2")
    a("s_add_u32 s36, s36, s3")
    a("s_lshl_b32 s36, s36, 13")
    PFG = {OPT.get("g3_pf0", 6): 0, OPT.get("g3_pf1", 7): 1, OPT.get("g3_pf2", 8): 2}
    hv = ["g0"] * 7 + ["g1"] * 7
    for g in range(10):
        lim = min(10, g + RING)
        while nxt < lim and nxt <= g + DEPTH:
            gissue(nxt); hv += [f"g{nxt}"] * 7; nxt += 1
        if g in PFG:
            a(f"buffer_load_dword v{20+PFG[g]}, v9, s[20:23], s36 offen")
            a(f"s_add_u32 s36, s36, {128*8192}")
            hv.append("pf")
        if g + 1 < 10: a(f"s_waitcnt vmcnt({hv[::-1].index(f'g{g+1}')})")
        a("s_barrier")
    ts_flush(a, 3)
    a.label(f"{name}_end")
    a("s_endpgm")
    return dict(grid=256, block=512, lds=LCS + 1024, vgpr=256)

def k_spin(a, name):
    a(f"""
    s_cmp_ge_u32 s2, 1
    s_cbranch_scc1 {name}_end
    s_load_dwordx2 s[8:9], s[0:1], 72
    s_waitcnt lgkmcnt(0)
    s_add_u32 s8, s8, {hex(WS_PROF)}
    s_addc_u32 s9, s9, 0
    s_load_dword s10, s[8:9], 0
    s_waitcnt lgkmcnt(0)
    {name}_loop:
    s_memrealtime s[12:13]
    s_waitcnt lgkmcnt(0)
    s_sub_u32 s12, s12, s10
    s_cmp_lt_u32 s12, 10000
    s_cbranch_scc1 {name}_loop
    {name}_end:
    s_endpgm
    """)
    return dict(grid=1, block=64, lds=0, vgpr=8)

KERNELS = [("k_qkv_kernel", k_qkv), ("k_attn_kernel", k_attn), ("k_g2_kernel", lambda a, n: k_g24(a, n, 2)),
           ("k_g3_kernel", k_g3), ("k_g4_kernel", lambda a, n: k_g24(a, n, 4))]

HEADER = open("sequential_preLN__mha_block__glu_gated_reglu__prompt.s.ref").read().split("; Override")[0]

def build(kernels=None, report=False):
    kernels = kernels or KERNELS
    launch, body, desc = "", "", '.section .rodata,"a"\n'
    for name, fn in kernels:
        a = Asm()
        cfg = fn(a, name)
        rep = []
        a.fix(rep)
        if report:
            print(name, "instrs", len(a.items), "nops inserted", len(rep), sum(r[1] for r in rep))
        launch += f"; @launch kernel={name} grid=({cfg['grid']},1,1) block=({cfg['block']},1,1) lds={cfg['lds']}\n"
        body += f".globl {name}\n.p2align 8\n.type {name},@function\n{name}:\n" + a.text()
        v = (cfg["vgpr"] + 7) // 8 * 8
        desc += f""".p2align 6
.amdhsa_kernel {name}
  .amdhsa_next_free_vgpr {v}
  .amdhsa_next_free_sgpr 102
  .amdhsa_accum_offset {v}
  .amdhsa_group_segment_fixed_size 0
  .amdhsa_kernarg_size 80
  .amdhsa_user_sgpr_count 2
  .amdhsa_user_sgpr_kernarg_segment_ptr 1
  .amdhsa_system_sgpr_workgroup_id_x 1
.end_amdhsa_kernel
"""
    return HEADER + launch + '.amdgcn_target "amdgcn-amd-amdhsa--gfx950"\n.text\n' + body + desc

if __name__ == "__main__":
    out = sys.argv[1] if len(sys.argv) > 1 else "sequential_preLN__mha_block__glu_gated_reglu__prompt.s"
    for kv in sys.argv[3:]:
        k_, v_ = kv.split("=")
        try: OPT[k_] = int(v_)
        except ValueError: OPT[k_] = v_.replace("+", " ")
    if len(sys.argv) > 2 and sys.argv[2] == "prof": PROF = True
    if len(sys.argv) > 2 and sys.argv[2] == "dbg": DBG = True
    if len(sys.argv) > 2 and sys.argv[2] == "spin":
        DBG = True
        for j in range(1, len(KERNELS) + 1):
            open(out.replace(".s", f"{j}.s"), "w").write(build(KERNELS[:j] + [("k_spin_kernel", k_spin)] + KERNELS[j:]))
        sys.exit(0)
    open(out, "w").write(build(report=True))
```

```python
import sys, struct
sys.path.insert(0, "dev")
from asmb import Asm

S, D, H, DH, F = 2048, 640, 32, 20, 1728
WS_Q, WS_KV, WS_O, WS_H, WS_ACT = 0x0, 0x300000, 0x800000, 0xB00000, 0xE00000
WS_ST, WS_CS, WS_WP = 0x1500000, 0x1540000, 0x1600000
WP_UNITS = 7440
WS_WDP, WS_WOP, WS_WGP = WS_WP, WS_WP + 2160 * 1024, WS_WP + 2960 * 1024
OPT = {}
SZ_X = S * D * 2
ACT_KS = 56
CS_UP = 1792 * 4

def f32(x): return "0x%08x" % struct.unpack("<I", struct.pack("<f", x))[0]
def vr(b, n): return f"v[{b}:{b+n-1}]" if n > 1 else f"v{b}"

def srd(a, d, ptr, off, size):
    if off:
        a(f"s_add_u32 s{d}, s{ptr}, {hex(off)}")
        a(f"s_addc_u32 s{d+1}, s{ptr+1}, 0")
    else:
        a(f"s_mov_b32 s{d}, s{ptr}")
        a(f"s_mov_b32 s{d+1}, s{ptr+1}")
    a(f"s_mov_b32 s{d+2}, {hex(size)}")
    a(f"s_mov_b32 s{d+3}, 0x00020000")

PROF = False
WS_PROF = 0x3000000
def ts(a, slot, real=False):
    if PROF: a(f"{'s_memrealtime' if real else 's_memtime'} s[{64+2*slot}:{65+2*slot}]")
def ts_flush(a, kidx, n=12):
    if DBG: dbg_stamp(a, kidx)
    if not PROF: return
    a("s_waitcnt vmcnt(0)")
    ts(a, n - 2); ts(a, n - 1, True)
    a("s_mov_b64 exec, 1")
    srd(a, 96, 8, WS_PROF, 0x1000000)
    a(f"s_add_u32 s100, s2, {kidx*256}")
    a("s_lshl_b32 s100, s100, 3")
    a("s_add_u32 s100, s100, s101")
    a("s_lshl_b32 s100, s100, 6")
    a("v_mov_b32 v1, s100")
    a("s_waitcnt lgkmcnt(0)")
    for i in range(n):
        a(f"v_mov_b32 v0, s{64+2*i}")
        a(f"buffer_store_dword v0, v1, s[96:99], 0 offen offset:{i*4}")
    a("s_waitcnt vmcnt(0)")
DBG = False
def dbg_stamp(a, kidx):
    lab = a.newlabel(f"dbgskip{kidx}")
    a("s_waitcnt vmcnt(0)")
    a("s_or_b32 s100, s2, s101")
    a("s_cmp_lg_u32 s100, 0")
    a(f"s_cbranch_scc1 {lab}")
    a("s_load_dwordx2 s[96:97], s[0:1], 64")
    a("s_memrealtime s[66:67]")
    a("s_waitcnt lgkmcnt(0)")
    a(f"s_add_u32 s96, s96, {(4-kidx)*512}")
    a("s_addc_u32 s97, s97, 0")
    a("s_mov_b32 s98, 64")
    a("s_mov_b32 s99, 0x00020000")
    a("s_mov_b64 exec, 1")
    a("v_mov_b32 v0, s64")
    a("v_mov_b32 v1, s66")
    a(f"v_mov_b32 v2, {kidx*8}")
    a("buffer_store_dwordx2 v[0:1], v2, s[96:99], 0 offen")
    a("s_waitcnt vmcnt(0)")
    if kidx == 0:
        srd(a, 96, 8, WS_PROF, 64)
        a("buffer_store_dword v0, v2, s[96:99], 0 offen")
        a("s_waitcnt vmcnt(0)")
    a.label(lab)
def ts_init(a):
    if DBG: a("s_memrealtime s[64:65]")
    if not PROF: return
    ts(a, 0); ts(a, 9, True)
    for i in range(1, 9): a(f"s_mov_b32 s{64+2*i}, 0")

def bf16_round(a, v, tmp=None):
    a(f"v_cvt_pk_bf16_f32 v{v}, v{v}, v{v}")
    a(f"v_and_b32 v{v}, 0xffff0000, v{v}")

def ln_stats(a, s1, s2, t, n=640):
    a(f"v_mul_f32 v{s1}, {f32(1.0/n)}, v{s1}")
    a(f"v_mul_f32 v{s2}, {f32(1.0/n)}, v{s2}")
    a(f"v_fma_f32 v{s2}, -v{s1}, v{s1}, v{s2}")
    a(f"v_max_f32 v{s2}, 0, v{s2}")
    bf16_round(a, s2)
    a(f"v_add_f32 v{s2}, {f32(1e-5)}, v{s2}")
    bf16_round(a, s2)
    a(f"v_sqrt_f32 v{s2}, v{s2}")
    bf16_round(a, s2)
    a(f"v_rcp_f32 v{s2}, v{s2}")
    bf16_round(a, s1)
    a(f"v_sub_f32 v{s1}, 0, v{s1}")

def swap_sum(a, v, t, which):
    a(f"v_mov_b32 v{t}, v{v}")
    a(f"v_permlane{which}_swap_b32 v{v}, v{t}")
    a(f"v_add_f32 v{v}, v{v}, v{t}")

def code_warm(a, name, chunk, vo, sp):
    lab = a.newlabel(f"{name}_cw")
    a(f"s_getpc_b64 s[{sp}:{sp+1}]")
    a.label(lab)
    a(f"s_lshl_b32 s{sp+2}, s{chunk}, 13")
    a(f"v_lshlrev_b32 v{vo}, 7, v0")
    a(f"v_add_u32 v{vo}, s{sp+2}, v{vo}")
    a(f"v_min_u32 v{vo}, code_end-k_qkv_kernel-4, v{vo}")
    a(f"s_sub_u32 s{sp}, s{sp}, {lab}-k_qkv_kernel")
    a(f"s_subb_u32 s{sp+1}, s{sp+1}, 0")
    a(f"v_mov_b32 v{vo+1}, s{sp+1}")
    a(f"v_add_co_u32 v{vo}, vcc, s{sp}, v{vo}")
    a(f"v_addc_co_u32 v{vo+1}, vcc, 0, v{vo+1}, vcc")
    a(f"global_load_dword v{vo}, v[{vo}:{vo+1}], off")

def k_qkv(a, name):
    LB = 65536
    LCS, LNM, LRS = 131072, 131072 + 512, 131072 + 1024
    ts_init(a)
    a(f"""
    s_cmp_ge_u32 s2, 240
    s_cbranch_scc1 {name}_end
    s_load_dwordx4 s[4:7], s[0:1], 0
    s_load_dwordx4 s[24:27], s[0:1], 32
    s_load_dwordx2 s[8:9], s[0:1], 72
    v_lshrrev_b32 v1, 6, v0
    v_and_b32 v0, 63, v0
    v_readfirstlane_b32 s3, v1
    v_readfirstlane_b32 s101, v1
    s_and_b32 s28, s2, 7
    s_lshr_b32 s29, s2, 3
    s_lshr_b32 s30, s28, 2
    s_mul_i32 s30, s30, 30
    s_add_u32 s30, s30, s29          ; t
    s_lshr_b32 s31, s30, 2           ; cb
    s_and_b32 s30, s30, 3
    s_and_b32 s28, s28, 3
    s_lshl_b32 s28, s28, 2
    s_add_u32 s30, s30, s28          ; rb
    v_and_b32 v2, 31, v0             ; l&31
    v_lshrrev_b32 v3, 5, v0          ; hf
    v_bfe_u32 v4, v0, 1, 3           ; ((l&31)>>1)&7
    s_cmp_ge_u32 s3, 4
    s_cbranch_scc1 {name}_helper
    """)
    XA, WA, XF, WF, ACC, CSA, ONES, SO = 8, 12, 16, 32, 48, 112, 116, 120
    XA2, SA, ST = 128, 132, 136
    a("s_setprio 2")
    if OPT.get("cw", 1):
        a("s_lshl_b32 s32, s29, 2")
        a("s_add_u32 s32, s32, s3")
        a(f"s_cmp_ge_u32 s32, {OPT.get('cw_n', 9)}")
        a(f"s_cbranch_scc1 {name}_nocw")
        code_warm(a, name, 32, 190, 34)
        a.label(f"{name}_nocw")
    a("s_and_b32 s32, s3, 1")
    a("s_lshr_b32 s33, s3, 1")
    a("s_lshl_b32 s34, s32, 13")
    a("s_lshl_b32 s35, s33, 12")
    a("s_add_u32 s34, s34, s35")
    a("v_lshlrev_b32 v5, 7, v2")
    a("v_add_u32 v5, s34, v5")
    for ks in range(4):
        a(f"v_or_b32 v6, {2*ks}, v3")
        a("v_xor_b32 v6, v6, v4")
        a(f"v_lshl_add_u32 v{XA+ks}, v6, 4, v5")
        a(f"v_xor_b32 v{XA2+ks}, 4096, v{XA+ks}")
    for i in range(4): a(f"v_mov_b32 v{SA+i}, 0")
    a("s_mov_b32 s47, 0xffff0000")
    a("v_bfe_u32 v5, v0, 2, 2")
    a("v_lshl_add_u32 v6, v3, 3, v5")
    a("v_lshlrev_b32 v6, 8, v6")
    a("v_bfe_u32 v7, v0, 4, 1")
    a("v_lshl_add_u32 v6, v7, 5, v6")
    a("v_and_b32 v7, 3, v0")
    a("v_lshl_add_u32 v6, v7, 3, v6")
    a(f"v_add_u32 v6, {LB}, v6")
    a("s_lshl_b32 s35, s33, 1")
    a("s_add_u32 s35, s35, s32")
    for blk in range(2):
        a(f"s_xor_b32 s36, s35, {blk}")
        a("v_xor_b32 v7, s36, v5")
        a(f"v_lshl_add_u32 v{WA+blk}, v7, 6, v6")
    a("v_and_b32 v5, 15, v0")
    a("v_bfe_u32 v6, v0, 4, 1")
    a("v_cmp_eq_u32 vcc, v5, v6")
    a("v_mov_b32 v5, 0x3f803f80")
    a(f"v_cndmask_b32 v{ONES}, 0, v5, vcc")
    for i in range(1, 4): a(f"v_mov_b32 v{ONES+i}, v{ONES}")
    for i in range(68): a(f"v_mov_b32 v{ACC+i}, 0")
    a("s_waitcnt lgkmcnt(0)")
    a("s_cmp_ge_u32 s31, 10")
    a(f"s_cbranch_scc1 {name}_vsetup")
    a("s_cmp_ge_u32 s31, 5")
    a("s_cselect_b32 s37, 5, 0")
    a("s_sub_u32 s37, s31, s37")
    a("s_cmp_ge_u32 s31, 5")
    a(f"s_cselect_b32 s38, {hex(WS_KV)}, {hex(WS_Q)}")
    a("s_movk_i32 s39, 1280")
    a("s_cselect_b32 s39, 2560, s39")
    a(f"s_cselect_b32 s40, {f32(1.0)}, {f32(DH ** -0.5 * 1.4426950408889634)}")
    a("s_add_u32 s20, s8, s38")
    a("s_addc_u32 s21, s9, 0")
    a("s_lshl_b32 s22, s39, 11")
    a("s_mov_b32 s23, 0x00020000")
    a("s_lshl_b32 s41, s39, 6")
    a("s_lshl_b32 s42, s30, 2")
    a("s_lshl_b32 s43, s32, 1")
    a("s_add_u32 s42, s42, s43")
    a("s_add_u32 s42, s42, s33")
    a("s_xor_b32 s43, s42, 1")
    a("s_mul_i32 s42, s42, s39")
    a("s_mul_i32 s43, s43, s39")
    a("v_bfe_u32 v5, v2, 2, 1")
    a("v_bfe_u32 v6, v2, 3, 1")
    a("v_xor_b32 v5, v5, v6")
    a("v_mul_u32_u24 v5, 12, v5")
    a("v_xor_b32 v5, v5, v2")
    a("s_cmp_ge_u32 s31, 5")
    a("s_cselect_b64 vcc, -1, 0")
    a("v_cndmask_b32 v5, v2, v5, vcc")
    a("v_lshlrev_b32 v5, 4, v5")
    a("s_lshl_b32 s44, s37, 5")
    a("s_lshl_b32 s45, s33, 4")
    a("s_add_u32 s44, s44, s45")
    for fb in range(2):
        a(f"s_xor_b32 s45, s32, {fb}")
        a("s_lshl_b32 s45, s45, 3")
        a("s_add_u32 s45, s45, s44")
        a("v_add_u32 v6, s45, v3")
        for q in range(4):
            d = SO + fb * 4 + q
            a(f"v_add_u32 v7, {2*q}, v6")
            a("v_mul_u32_u24 v1, 205, v7")
            a("v_lshrrev_b32 v1, 10, v1")
            a("v_mul_u32_u24 v4, 5, v1")
            a("v_sub_u32 v7, v7, v4")
            a(f"v_mul_lo_u32 v{d}, v1, s41")
            a("v_lshrrev_b32 v1, 1, v7")
            a(f"v_lshl_add_u32 v{d}, v1, 9, v{d}")
            a("v_and_b32 v1, 1, v7")
            a(f"v_lshl_add_u32 v{d}, v1, 3, v{d}")
            a("v_lshrrev_b32 v1, 2, v7")
            a("v_lshrrev_b32 v1, v1, v5")
            a(f"v_add_u32 v{d}, v{d}, v1")

    QST = OPT.get("q_st", 4)
    def reads(n):
        c, ks = n >> 2, n & 3
        st = (c & 3) * 16384
        b = n & 1
        o = []
        for blk in range(2):
            o.append(f"ds_read_b128 {vr(XF+b*8+blk*4,4)}, v{(XA2 if blk else XA)+ks} offset:{st}")
            o.append(f"ds_read_b64_tr_b16 {vr(WF+b*8+blk*4,2)}, v{WA+blk} offset:{st+ks*4096}")
            o.append(f"ds_read_b64_tr_b16 {vr(WF+b*8+blk*4+2,2)}, v{WA+blk} offset:{st+ks*4096+1024}")
        return o

    def stat(r, t):
        return [f"v_lshlrev_b32 v{t}, 16, v{r}", f"v_and_b32 v{t+1}, s47, v{r}", f"v_add_f32 v{SA}, v{SA}, v{t}",
                f"v_add_f32 v{SA+1}, v{SA+1}, v{t+1}", f"v_fmac_f32 v{SA+2}, v{t}, v{t}", f"v_fmac_f32 v{SA+3}, v{t+1}, v{t+1}"]

    def mainloop(isv):
        BP = OPT.get("q_bpos", 1)
        ts(a, 1)
        a("s_barrier")
        ts(a, 2)
        for x in reads(0): a(x)
        for n in range(40):
            b = n & 1
            bar = (n & 3) == 3
            rd = reads(n + 1) if n < 39 else []
            sv = sum((stat(XF + b * 8 + i, ST + (i & 1) * 2) for i in range(QST)), [])
            if OPT.get('x_nostat'): sv = []
            first = BP if bar else 0
            gaps = [[] for _ in range(5)]
            gaps[first] += rd[:3]; gaps[first + 1] += rd[3:]
            order = sorted(range(4), key=lambda g: len(gaps[g]))
            tot = len(rd) + len(sv)
            quota = [(tot + 3 - g) // 4 for g in range(4)]
            for g in range(4):
                k = max(0, quota[g] - len(gaps[g]))
                gaps[g] += sv[:k]; sv = sv[k:]
            gaps[3] += sv
            a("s_waitcnt lgkmcnt(0)")
            for g in range(4):
                fb, tb = g >> 1, (g & 1) ^ (g >> 1)
                acc = vr(ACC + (fb * 2 + tb) * 16, 16)
                x, w = vr(XF + b * 8 + tb * 4, 4), vr(WF + b * 8 + fb * 4, 4)
                if isv: a(f"v_mfma_f32_32x32x16_bf16 {acc}, {x}, {w}, {acc}")
                else:   a(f"v_mfma_f32_32x32x16_bf16 {acc}, {w}, {x}, {acc}")
                if bar and g == first:
                    a("s_barrier")
                    if n in (3, 15, 27, 39): ts(a, 3 + n // 12)
                for x_ in gaps[g]: a(x_)
            a(f"v_mfma_f32_16x16x32_bf16 {vr(CSA,4)}, {vr(ONES,4)}, {vr(WF+b*8,4)}, {vr(CSA,4)}")

    def cs_publish():
        a("s_lshl_b32 s46, s32, 1")
        a("s_add_u32 s46, s46, s33")
        a("s_lshl_b32 s46, s46, 7")
        a(f"s_add_u32 s48, s46, {LNM}")
        if QST:
            a("v_lshlrev_b32 v1, 2, v2")
            a("v_add_u32 v1, s48, v1")
            if QST < 4: a(f"ds_read2_b32 {vr(ST+2,2)}, v1 offset0:0 offset1:128")
            a(f"v_add_f32 v{SA}, v{SA}, v{SA+1}")
            a(f"v_add_f32 v{SA+2}, v{SA+2}, v{SA+3}")
            swap_sum(a, SA, ST, 32)
            swap_sum(a, SA + 2, ST + 1, 32)
            if QST < 4:
                a("s_waitcnt lgkmcnt(0)")
                a(f"v_add_f32 v{SA}, v{SA}, v{ST+2}")
                a(f"v_add_f32 v{SA+2}, v{SA+2}, v{ST+3}")
            ln_stats(a, SA, SA + 2, ST)
            a(f"ds_write2_b32 v1, v{SA}, v{SA+2} offset0:0 offset1:128")
        a("s_lshl_b32 s46, s33, 1")
        a("s_add_u32 s46, s46, s32")
        a("s_lshl_b32 s46, s46, 7")
        a(f"s_add_u32 s46, s46, {LCS}")
        a("v_lshlrev_b32 v1, 2, v0")
        a("v_add_u32 v1, s46, v1")
        a("s_mov_b64 exec, 0xffff")
        a(f"ds_write2_b32 v1, v{CSA}, v{CSA+1} offset0:0 offset1:16")
        a("s_mov_b64 exec, -1")
        a("s_waitcnt vmcnt(0) lgkmcnt(0)")
        a("s_barrier")
        ts(a, 7)

    for isv in (0, 1):
        if isv:
            a.label(f"{name}_vsetup")
            srd(a, 20, 8, WS_KV, 32 * 163840)
            a("s_sub_u32 s37, s31, 10")
            a("s_lshl_b32 s42, s30, 2")
            a("s_lshl_b32 s43, s32, 1")
            a("s_add_u32 s42, s42, s43")
            a("s_add_u32 s42, s42, s33")
            a("s_xor_b32 s43, s42, 1")
            a("s_mul_i32 s42, s42, 2560")
            a("s_mul_i32 s43, s43, 2560")
            a("s_lshl_b32 s44, s37, 7")
            a("s_lshl_b32 s45, s33, 6")
            a("s_add_u32 s44, s44, s45")
            a("s_mov_b32 s41, 163840")
            for fb in range(2):
                d = SO + fb
                a(f"s_xor_b32 s45, s32, {fb}")
                a("s_lshl_b32 s45, s45, 5")
                a("s_add_u32 s45, s45, s44")
                a(f"v_add_u32 v7, s45, v2")
                a("v_mul_u32_u24 v1, 3277, v7")
                a("v_lshrrev_b32 v1, 16, v1")
                a("v_mul_u32_u24 v4, 20, v1")
                a("v_sub_u32 v7, v7, v4")
                a(f"v_mul_lo_u32 v{d}, v1, s41")
                a(f"v_lshl_add_u32 v{d}, v7, 4, v{d}")
                a(f"v_lshl_add_u32 v{d}, v3, 3, v{d}")
                a(f"v_add_u32 v{d}, 1280, v{d}")
        mainloop(isv)
        cs_publish()
        T = 16
        if not isv:
            a("v_lshlrev_b32 v1, 4, v3")
            a("v_add_u32 v1, s46, v1")
            a("v_xor_b32 v4, 128, v1")
            for fb in range(2):
                for q in range(4):
                    a(f"ds_read_b128 {vr(128+fb*16+q*4,4)}, v{4 if fb else 1} offset:{q*32}")
            a("v_lshlrev_b32 v1, 2, v2")
            a("v_add_u32 v1, s48, v1")
            a("v_xor_b32 v4, 128, v1")
            for tb in range(2):
                a(f"ds_read2_b32 {vr(16+tb*2,2)}, v{4 if tb else 1} offset0:0 offset1:128")
            a("s_waitcnt lgkmcnt(0)")
            for tb in range(2): a(f"v_mul_f32 v{17+tb*2}, s40, v{17+tb*2}")
            k = 0
            for fb in range(2):
                for tb in range(2):
                    for q in range(4):
                        r = ACC + (fb * 2 + tb) * 16 + q * 4
                        c = 128 + fb * 16 + q * 4
                        mr = vr(16 + tb * 2, 2)
                        for h in (0, 2):
                            a(f"v_pk_fma_f32 {vr(r+h,2)}, {vr(c+h,2)}, {mr}, {vr(r+h,2)} op_sel_hi:[1,0,1]")
                        for h in (0, 2):
                            a(f"v_pk_mul_f32 {vr(r+h,2)}, {vr(r+h,2)}, {mr} op_sel:[0,1] op_sel_hi:[1,1]")
                        t = 20 + (k % 8) * 2; k += 1
                        a(f"v_cvt_pk_bf16_f32 v{t}, v{r}, v{r+1}")
                        a(f"v_cvt_pk_bf16_f32 v{t+1}, v{r+2}, v{r+3}")
                        a(f"buffer_store_dwordx2 {vr(t,2)}, v{SO+fb*4+q}, s[20:23], s{42+tb} offen{OPT.get('q_fl', '')}")
        else:
            a("v_lshlrev_b32 v1, 2, v2")
            a("v_add_u32 v1, s46, v1")
            a("v_xor_b32 v4, 128, v1")
            for fb in range(2):
                a(f"ds_read_b32 v{16+fb*2}, v{4 if fb else 1}")
            a("v_lshlrev_b32 v1, 4, v3")
            a("v_add_u32 v1, s48, v1")
            a("v_xor_b32 v4, 128, v1")
            for tb in range(2):
                for q in range(4):
                    a(f"ds_read_b128 {vr(128+tb*16+q*4,4)}, v{4 if tb else 1} offset:{q*32}")
                    a(f"ds_read_b128 {vr(160+tb*16+q*4,4)}, v{4 if tb else 1} offset:{512+q*32}")
            a("s_waitcnt lgkmcnt(0)")
            k = 0
            for fb in range(2):
                for tb in range(2):
                    for q in range(4):
                        r = ACC + (fb * 2 + tb) * 16 + q * 4
                        m = 128 + tb * 16 + q * 4
                        cs = vr(16 + fb * 2, 2)
                        for h in (0, 2):
                            a(f"v_pk_fma_f32 {vr(r+h,2)}, {vr(m+h,2)}, {cs}, {vr(r+h,2)} op_sel_hi:[1,0,1]")
                        for h in (0, 2):
                            a(f"v_pk_mul_f32 {vr(r+h,2)}, {vr(r+h,2)}, {vr(m+32+h,2)}")
                        t = 20 + (k % 8) * 2; k += 1
                        a(f"v_cvt_pk_bf16_f32 v{t}, v{r}, v{r+1}")
                        a(f"v_cvt_pk_bf16_f32 v{t+1}, v{r+2}, v{r+3}")
                        a(f"buffer_store_dwordx2 {vr(t,2)}, v{SO+fb}, s[20:23], s{42+tb} offen offset:{(q>>1)*640+(q&1)*320}{OPT.get('q_fl', '')}")
        ts(a, 8)
        ts_flush(a, 0)
        a("s_endpgm")

    a.label(f"{name}_helper")
    a("s_sub_u32 s3, s3, 4")
    a("s_and_b32 s32, s3, 1")
    a("s_lshl_b32 s32, s32, 2")
    a("v_lshrrev_b32 v5, 4, v0")
    a("v_add_u32 v6, s32, v5")
    a("v_and_b32 v7, 7, v0")
    a("v_xor_b32 v6, v6, v7")
    a("v_lshlrev_b32 v6, 4, v6")
    a("v_lshrrev_b32 v7, 3, v0")
    a("s_lshl_b32 s33, s3, 3")
    a("v_add_u32 v7, s33, v7")
    a("v_mul_u32_u24 v7, 1280, v7")
    a("v_add_u32 v8, v7, v6")
    a("s_lshl_b32 s33, s3, 2")
    a("v_add_u32 v7, s33, v5")
    a("v_mul_u32_u24 v7, 3840, v7")
    a("v_bfe_u32 v6, v0, 2, 2")
    a("v_xor_b32 v6, v6, v5")
    a("v_lshl_add_u32 v7, v6, 6, v7")
    a("v_and_b32 v6, 3, v0")
    a("v_lshl_add_u32 v9, v6, 4, v7")
    a("s_mul_i32 s34, s30, 163840")
    a("s_lshl_b32 s35, s31, 8")
    a("s_lshl_b32 s36, s3, 10")
    a("s_waitcnt lgkmcnt(0)")
    srd(a, 12, 4, 0, SZ_X)
    srd(a, 16, 6, 0, D * 1920 * 2)
    def issue(c):
        st = (c & 3) * 16384
        o = []
        for j in range(4):
            o.append([f"s_add_u32 m0, s36, {st + j*4096}", f"s_add_u32 s37, s34, {c*128 + j*40960}", "buffer_load_dwordx4 v8, s[12:15], s37 offen lds"])
            o.append([f"s_add_u32 m0, s36, {LB + st + j*4096}", f"s_add_u32 s38, s35, {(c*64 + j*16)*3840}", "buffer_load_dwordx4 v9, s[16:19], s38 offen lds"])
        return o
    QPRE, QDEP = OPT.get("q_pre", 2), OPT.get("q_dep", 2)
    ts(a, 1)
    for c in range(QPRE):
        for g in issue(c):
            for x in g: a(x)
    ts(a, 2)
    if QST < 4:
        a("s_lshl_b32 s33, s3, 12")
        a("v_lshlrev_b32 v5, 7, v2")
        a("v_add_u32 v5, s33, v5")
        for ks in range(4):
            a(f"v_or_b32 v6, {2*ks}, v3")
            a("v_xor_b32 v6, v6, v4")
            a(f"v_lshl_add_u32 v{10+ks}, v6, 4, v5")
        for i in range(4): a(f"v_mov_b32 v{32+i}, 0")
        a("s_mov_b32 s39, 0xffff0000")
        a("s_lshl_b32 s33, s3, 7")
        a(f"s_add_u32 s33, s33, {LNM}")
        a("v_lshlrev_b32 v40, 2, v2")
        a("v_add_u32 v40, s33, v40")
    a(f"s_waitcnt vmcnt({8*(QPRE-1)})")
    ts(a, 3)
    a("s_barrier")
    nxt = QPRE
    ncs = 0
    for c in range(10):
        dm = []
        while nxt <= min(9, c + QDEP): dm += issue(nxt); nxt += 1
        if OPT.get('x_nodma'): dm = []
        st = (c & 3) * 16384
        work = []
        if QST < 4:
            for ks in range(4): a(f"ds_read_b128 {vr(16+ks*4,4)}, v{10+ks} offset:{st}")
            for ks in range(4):
                for i in range(QST, 4):
                    r = 16 + ks * 4 + i
                    t = 36 + (i & 1) * 2
                    work.append(([f"s_waitcnt lgkmcnt({3-ks})"] if i == QST else []) +
                                [f"v_lshlrev_b32 v{t}, 16, v{r}", f"v_and_b32 v{t+1}, s39, v{r}", f"v_add_f32 v32, v32, v{t}",
                                 f"v_add_f32 v33, v33, v{t+1}", f"v_fmac_f32 v34, v{t}, v{t}", f"v_fmac_f32 v35, v{t+1}, v{t+1}"])
        per = -(-len(work) // max(1, len(dm))) if OPT.get("q_il", 1) else 0
        while dm or work:
            if dm:
                for x in dm.pop(0): a(x)
            k = per if dm else len(work)
            for w_ in work[:k]:
                for x in w_: a(x)
            work = work[k:]
        if c == 9 and QST < 4:
            a("v_add_f32 v32, v32, v33")
            a("v_add_f32 v34, v34, v35")
            swap_sum(a, 32, 36, 32)
            swap_sum(a, 34, 36, 32)
            if QST == 0: ln_stats(a, 32, 34, 36)
            a("ds_write2_b32 v40, v32, v34 offset0:0 offset1:128")
            a("s_waitcnt lgkmcnt(0)")
        if nxt == 10 and not ncs:
            ncs = 5
            a("s_lshr_b32 s40, s2, 2")
            a("s_and_b32 s41, s2, 3")
            a("s_lshl_b32 s41, s41, 2")
            a("s_add_u32 s41, s41, s3")
            a("v_lshrrev_b32 v41, 3, v0")
            a("v_mul_u32_u24 v41, 3456, v41")
            a("v_and_b32 v42, 7, v0")
            a("v_lshl_add_u32 v41, v42, 4, v41")
            a(f"s_mul_i32 s42, s41, {40*3456}")
            a(f"s_mul_i32 s43, s41, {2*CS_UP}")
            a("s_cmp_ge_u32 s40, 27")
            a("s_cselect_b32 s20, s26, s24")
            a("s_cselect_b32 s21, s27, s25")
            a("s_cselect_b32 s44, 27, 0")
            a(f"s_cselect_b32 s45, {CS_UP}, 0")
            a("s_add_u32 s43, s43, s45")
            a("s_sub_u32 s44, s40, s44")
            a("s_lshl_b32 s45, s44, 7")
            a("s_add_u32 s42, s42, s45")
            a("s_lshl_b32 s45, s44, 8")
            a("s_add_u32 s43, s43, s45")
            a("s_cmp_lt_u32 s40, 54")
            a(f"s_cselect_b32 s22, {D*F*2}, 0")
            a("s_mov_b32 s23, 0x00020000")
            for i in range(5):
                a(f"buffer_load_dwordx4 {vr(44+i*4,4)}, v41, s[20:23], s42 offen")
                if i < 4: a(f"s_add_u32 s42, s42, {8*3456}")
        if c < 9: a(f"s_waitcnt vmcnt({8*(nxt-1-(c+1))+ncs})")
        a("s_barrier")
    a("s_barrier")
    a("s_cmp_ge_u32 s40, 54")
    a(f"s_cbranch_scc1 {name}_hend")
    srd(a, 16, 8, WS_CS, 32 * CS_UP)
    for i in range(8): a(f"v_mov_b32 v{16+i}, 0")
    a("s_mov_b32 s38, 0x00003f80")
    a("s_mov_b32 s39, 0x3f800000")
    for i in range(5):
        a(f"s_waitcnt vmcnt({4-i})")
        for j in range(4):
            r = 44 + i * 4 + j
            a(f"v_dot2c_f32_bf16 v{16+2*j}, s38, v{r}")
            a(f"v_dot2c_f32_bf16 v{17+2*j}, s39, v{r}")
    a("s_nop 4")
    for i in range(8):
        a(f"v_add_f32_dpp v{16+i}, v{16+i}, v{16+i} row_ror:8 row_mask:0xf bank_mask:0xf")
    for wh in (16, 32):
        for i in range(8): swap_sum(a, 16 + i, 24 + i, wh)
    a("v_lshlrev_b32 v41, 5, v42")
    a("s_mov_b64 exec, 0xff")
    a("buffer_store_dwordx4 v[16:19], v41, s[16:19], s43 offen")
    a("buffer_store_dwordx4 v[20:23], v41, s[16:19], s43 offen offset:16")
    a.label(f"{name}_hend")

    ts_flush(a, 0)
    a.label(f"{name}_end")
    a("s_endpgm")
    return dict(grid=240, block=512, lds=131072 + 2048, vgpr=192)

def k_attn(a, name):
    AK, AB, AV, QA, QB, NEG, SS, PP, OO, KA, KB, VV, SO, MX = 2, 3, 4, 8, 12, 16, 32, 64, 72, 88, 96, 100, 116, 120
    PD, PO, PV = 123, 124, 128
    PF = 119
    NPRO = OPT.get("npro", 4)
    ts_init(a)
    a(f"""
    s_cmp_ge_u32 s2, 256
    s_cbranch_scc1 {name}_end
    s_load_dwordx16 s[32:47], s[0:1], 16
    s_load_dwordx2 s[28:29], s[0:1], 0
    v_lshrrev_b32 v1, 6, v0
    v_and_b32 v0, 63, v0
    v_readfirstlane_b32 s3, v1
    v_readfirstlane_b32 s101, v1
    s_and_b32 s4, s2, 7
    s_lshl_b32 s4, s4, 2
    s_lshr_b32 s5, s2, 6
    s_add_u32 s4, s4, s5              ; head
    s_bfe_u32 s5, s2, 0x30003         ; qb
    s_mul_i32 s6, s4, 163840
    s_add_u32 s6, s6, {hex(WS_KV)}
    s_lshl_b32 s7, s4, 3
    s_add_u32 s7, s7, s5
    s_lshl_b32 s7, s7, 3
    s_add_u32 s7, s7, s3
    s_mul_i32 s7, s7, 1280
    v_lshlrev_b32 v{AK}, 4, v0
    v_and_b32 v5, 31, v0
    v_lshlrev_b32 v{AB}, 3, v5
    v_add_u32 v{AB}, 1024, v{AB}
    v_mov_b32 v{QB}, 0
    v_mov_b32 v{QB+1}, 0
    s_lshl_b32 m0, s3, 10
    s_mov_b32 s14, 163840
    s_mov_b32 s15, 0x00020000
    s_mov_b32 s18, {hex(SZ_X)}
    s_mov_b32 s19, 0x00020000
    s_waitcnt lgkmcnt(0)
    s_add_u32 s12, s46, s6
    s_addc_u32 s13, s47, 0
    """)
    def dma():
        a(f"buffer_load_dwordx4 v{AK}, s[12:15], m0 offen lds")
        a("s_add_u32 m0, m0, 8192")
    dma()
    a("s_mov_b32 s16, s46")
    a("s_mov_b32 s17, s47")
    a(f"buffer_load_dwordx4 {vr(QA,4)}, v{AK}, s[16:19], s7 offen")
    a("s_mov_b32 exec_hi, 0")
    a(f"buffer_load_dwordx2 {vr(QB,2)}, v{AB}, s[16:19], s7 offen")
    a("s_mov_b64 exec, -1")
    for j in range(1, NPRO): dma()
    a("s_mov_b32 s8, s46")
    a("s_mov_b32 s9, s47")
    srd(a, 20, 8, WS_O, SZ_X)
    a("v_lshrrev_b32 v6, 5, v0")
    a("v_mul_u32_u24 v7, 320, v6")
    a(f"v_lshl_add_u32 v{AV}, v5, 4, v7")
    a(f"v_add_u32 v{AV}, 1280, v{AV}")
    a("v_cmp_eq_u32 vcc, 20, v5")
    a("v_mov_b32 v7, 0x3f803f80")
    a(f"v_cndmask_b32 v{VV}, 0, v7, vcc")
    for i in range(1, 16): a(f"v_mov_b32 v{VV+i}, v{VV}")
    a("s_mov_b32 s24, 0x000fffff")
    a("s_mov_b32 s25, 0x000fffff")
    a("s_lshl_b32 s10, s5, 4")
    a("s_lshl_b32 s11, s3, 1")
    a("s_add_u32 s10, s10, s11")
    a("v_bfe_u32 v7, v0, 4, 1")
    a("v_add_u32 v7, s10, v7")
    a("v_mul_u32_u24 v7, 20480, v7")
    a("v_and_b32 v1, 15, v0")
    a("v_lshl_add_u32 v7, v1, 4, v7")
    a("s_mul_i32 s10, s4, 5")
    a("v_add_u32 v6, s10, v6")
    for k in range(3):
        if k: a("v_add_u32 v6, 2, v6")
        a("v_lshrrev_b32 v1, 3, v6")
        a(f"v_lshl_add_u32 v{SO+k}, v1, 10, v7")
        a("v_and_b32 v1, 3, v6")
        a(f"v_lshl_add_u32 v{SO+k}, v1, 8, v{SO+k}")
        a("v_bfe_u32 v1, v6, 2, 1")
        a(f"v_lshl_add_u32 v{SO+k}, v1, 3, v{SO+k}")
    a(f"v_mov_b32 v{PD}, v{AK}")
    srd(a, 88, 8, WS_WP, WP_UNITS * 1024)
    a("s_lshl_b32 s30, s2, 3")
    a("s_add_u32 s30, s30, s3")
    REG = [(0, 40, F * D * 2, 270, 10, 1280), (2160, 32, D * D * 2, 100, 10, 1280),
           (2960, 36, D * F * 2, 140, 14, 3456), (5200, 38, D * F * 2, 140, 14, 3456)]
    for sl in range(4):
        lo, hi = sl * 2048, sl * 2048 + 2047
        regs = [r for i, r in enumerate(REG) if r[0] <= hi and (i == 3 or REG[i + 1][0] > lo)]
        d = 48 + 4 * sl
        def params(r): return [(d, f"s{r[1]}"), (d + 1, f"s{r[1]+1}"), (d + 2, hex(r[2])), (4, str(lo - r[0])), (5, str(r[3])), (6, str(-(-(1 << 20) // r[3]))),
                               (7, str(-(-(1 << 19) // r[4]))), (10, str(r[5] - r[4] * 16)), (11, str(r[4] * 16))]
        cur = params(regs[0])
        for dst, val in cur: a(f"s_mov_b32 s{dst}, {val}")
        for r in regs[1:]:
            a(f"s_cmp_ge_u32 s30, {r[0] - lo}")
            for (dst, val), (_, old) in zip(params(r), cur):
                a(f"s_cselect_b32 s{dst}, {val}, s{dst}")
        a(f"s_mov_b32 s{d+3}, 0x00020000")
        a("s_add_u32 s4, s4, s30")
        a("s_mul_i32 s6, s6, s4")
        a("s_lshr_b32 s6, s6, 20")
        a("s_mul_i32 s5, s5, s6")
        a("s_sub_u32 s4, s4, s5")
        a("s_lshl_b32 s4, s4, 6")
        a(f"s_mul_i32 s{92+sl}, s6, s11")
        a("v_add_u32 v1, s4, v0")
        a("v_mul_u32_u24 v5, s7, v1")
        a("v_lshrrev_b32 v5, 19, v5")
        a("v_mul_u32_u24 v5, s10, v5")
        a(f"v_lshl_add_u32 v{PO+sl}, v1, 4, v5")
    a("s_lshl_b32 s30, s30, 10")
    a("s_lshr_b32 s4, s2, 3")
    a("s_lshl_b32 s4, s4, 3")
    a("s_add_u32 s4, s4, s3")
    a("s_and_b32 s5, s2, 1")
    a(f"s_mul_i32 s5, s5, {1120*1024}")
    a(f"s_add_u32 s6, s5, {(2960-800)*1024}")
    a(f"s_add_u32 s7, s5, {(5200-1920)*1024}")
    a(f"s_mov_b32 s31, {2160*1024}")
    a("s_cmp_ge_u32 s4, 100")
    a("s_cselect_b32 s31, s6, s31")
    a("s_cmp_ge_u32 s4, 240")
    a("s_cselect_b32 s31, s7, s31")
    a("s_lshl_b32 s10, s4, 13")
    a("s_add_u32 s31, s31, s10")
    a("s_add_u32 s7, s7, s10")
    a(f"s_add_u32 s7, s7, {256*8192}")
    a("s_cmp_lt_u32 s4, 124")
    a(f"s_cselect_b32 s36, s7, {hex(WP_UNITS*1024)}")
    a("s_and_b32 s5, s2, 7")
    a("s_mul_i32 s5, s5, 327680")
    a("s_add_u32 s5, s5, s10")
    a(f"s_sub_u32 s5, s5, {216*8192}")
    a("s_cmp_ge_u32 s4, 216")
    a(f"s_cselect_b32 s37, s5, {hex(SZ_X)}")
    srd(a, 32, 28, 0, SZ_X)
    a(f"v_lshlrev_b32 v{PF}, 7, v0")
    a("s_mov_b32 s26, 1")
    a(f"s_mov_b32 s38, {OPT.get('pf_it', 12)}")
    a(f"s_mov_b32 s27, {OPT.get('pk_ld', 3)}")
    a(f"s_mov_b32 s28, {OPT.get('pk_st', 6)}")
    ts(a, 1)
    a(f"s_waitcnt vmcnt({NPRO-4})")
    a("s_barrier")
    ts(a, 2)
    a.label(f"{name}_maxpass")
    a(f"v_mov_b32 v{MX}, 0xff800000")
    a(f"v_mov_b32 v{MX+1}, v{AK}")
    a(f"v_mov_b32 v{MX+2}, v{AB}")
    a("s_mov_b32 s29, s26")
    a.label(f"{name}_maxloop")
    a(f"ds_read_b64 {vr(KB,2)}, v{MX+2}")
    a(f"ds_read_b128 {vr(KA,4)}, v{MX+1}")
    a(f"v_add_u32 v{MX+1}, 2560, v{MX+1}")
    a(f"v_add_u32 v{MX+2}, 2560, v{MX+2}")
    a("s_waitcnt lgkmcnt(0)")
    a(f"v_mfma_f32_32x32x8bf16_1k {vr(SS,16)}, {vr(KB,2)}, {vr(QB,2)}, 0")
    a(f"v_mfma_f32_32x32x16_bf16 {vr(SS,16)}, {vr(KA,4)}, {vr(QA,4)}, {vr(SS,16)}")
    for i in range(8): a(f"v_max3_f32 v{MX}, v{SS+2*i}, v{SS+2*i+1}, v{MX}")
    a("s_sub_u32 s29, s29, 1")
    a("s_cmp_lg_u32 s29, 0")
    a(f"s_cbranch_scc1 {name}_maxloop")
    a(f"ds_read_b64 {vr(KB,2)}, v{AB}")
    a(f"ds_read_b128 {vr(KA,4)}, v{AK}")
    a(f"ds_read_b64 {vr(KB+2,2)}, v{AB} offset:2560")
    a(f"ds_read_b128 {vr(KA+4,4)}, v{AK} offset:2560")
    a("s_mov_b64 exec, s[24:25]")
    a(f"ds_read_b128 {vr(VV,4)}, v{AV}")
    a(f"ds_read_b128 {vr(VV+4,4)}, v{AV} offset:640")
    a("s_mov_b64 exec, -1")
    a(f"v_mov_b32 v{MX+1}, v{MX}")
    a(f"v_permlane32_swap_b32 v{MX}, v{MX+1}")
    a(f"v_max_f32 v{MX}, v{MX}, v{MX+1}")
    for i in range(16): a(f"v_sub_f32 v{NEG+i}, 0, v{MX}")
    for i in range(16): a(f"v_mov_b32 v{OO+i}, 0")
    for i in range(4): a(f"v_mov_b32 v{PP+4+i}, 0")
    a("s_waitcnt lgkmcnt(0)")
    a(f"v_mfma_f32_32x32x8bf16_1k {vr(SS,16)}, {vr(KB,2)}, {vr(QB,2)}, {vr(NEG,16)}")
    a(f"v_mfma_f32_32x32x16_bf16 {vr(SS,16)}, {vr(KA,4)}, {vr(QA,4)}, {vr(SS,16)}")
    a("s_mov_b32 s29, 0")
    a("s_cmp_ge_u32 s3, 4")
    a("s_cselect_b64 vcc, -1, 0")
    a("s_setprio 1")
    a("s_nop 5")
    ts(a, 3)

    PLO = OPT.get("plo", 1)
    def prio(p):
        if not OPT.get("prio", 1): return
        l = a.newlabel(f"{name}_p")
        a(f"s_cbranch_vccnz {l}")
        a(f"s_setprio {p}")
        a.label(l)
    def step(u, last, ndma=0):
        c, n = u & 1, (u + 1) & 1
        s = SS + 16 * c
        o = u * 2560
        nxt = last is None or last >= 1
        nx2 = last is None or last >= 2
        ex = lambda i: a(f"v_exp_f32{'_e64' if i == 15 else ''} v{s+i}, v{s+i}")
        cv = lambda i: a(f"v_cvt_pk_bf16_f32 v{PP+i}, v{s+2*i}, v{s+2*i+1}")
        def slot(k):
            if (u & 3) == 3 and k == PLO: prio(0)
            if k >= 1 and k <= ndma: dma()
        if (u & 3) == 0: prio(2)
        slot(0)
        ex(0)
        a("s_waitcnt lgkmcnt(0)")
        if nxt: a(f"v_mfma_f32_32x32x8bf16_1k {vr(SS+16*n,16)}, {vr(KB+2*n,2)}, {vr(QB,2)}, {vr(NEG,16)}")
        if nx2:
            a(f"ds_read_b64 {vr(KB+2*c,2)}, v{AB} offset:{o+5120}")
            a(f"ds_read_b128 {vr(KA+4*c,4)}, v{AK} offset:{o+5120}")
        ex(1); ex(2)
        a(f"v_mfma_f32_32x32x16_bf16 {vr(OO,16)}, {vr(VV+8*n+4,4)}, {vr(PP+4,4)}, {vr(OO,16)}")
        slot(1)
        ex(3)
        if nxt:
            a("s_mov_b64 exec, s[24:25]")
            a(f"ds_read_b128 {vr(VV+8*n,4)}, v{AV} offset:{o+2560}")
            a(f"ds_read_b128 {vr(VV+8*n+4,4)}, v{AV} offset:{o+2560+640}")
            a("s_mov_b64 exec, -1")
        ex(4); ex(5); ex(6)
        if nxt: a(f"v_mfma_f32_32x32x16_bf16 {vr(SS+16*n,16)}, {vr(KA+4*n,4)}, {vr(QA,4)}, {vr(SS+16*n,16)}")
        slot(2)
        ex(7); ex(8)
        cv(0); cv(1); cv(2); cv(3)
        ex(9); ex(10)
        a(f"v_mfma_f32_32x32x16_bf16 {vr(OO,16)}, {vr(VV+8*c,4)}, {vr(PP,4)}, {vr(OO,16)}")
        slot(3)
        for i in range(11, 16): ex(i)
        cv(4); cv(5); cv(6); cv(7)

    def adv(n):
        for r in (AK, AB, AV): a(f"v_add_u32 v{r}, {n}, v{r}")

    a("s_cmp_lg_u32 s26, 1")
    a(f"s_cbranch_scc1 {name}_loop")
    a(".p2align 3")
    left = 20 - NPRO
    for u in range(8):
        k = min(left, OPT.get("dps", 3)); left -= k
        step(u, None, k)
    assert left == 0
    adv(20480)
    a("s_mov_b32 s29, 2")
    ts(a, 4)
    a("s_waitcnt vmcnt(0)")
    a("s_barrier")
    ts(a, 5)
    a(".p2align 3")
    a.label(f"{name}_loop")
    for u in range(4): step(u, None)
    adv(10240)
    a("s_add_u32 s29, s29, 1")
    a("s_cmp_eq_u32 s29, s27")
    a(f"s_cbranch_scc1 {name}_pld")
    a("s_cmp_eq_u32 s29, s28")
    a(f"s_cbranch_scc1 {name}_pst")
    a("s_cmp_eq_u32 s29, s38")
    a(f"s_cbranch_scc1 {name}_pf")
    a("s_cmp_lt_u32 s29, 15")
    a(f"s_cbranch_scc1 {name}_loop")
    a(".p2align 3")
    for u in range(4): step(u, 3 - u)
    a(f"v_mfma_f32_32x32x16_bf16 {vr(OO,16)}, {vr(VV+12,4)}, {vr(PP+4,4)}, {vr(OO,16)}")
    a(f"v_mov_b32 v{MX}, v{OO+8}")
    a(f"v_mov_b32 v{MX+1}, v{OO+8}")
    a(f"v_permlane32_swap_b32 v{MX}, v{MX+1}")
    a(f"v_cmp_gt_f32 vcc, {f32(2.0**30)}, v{MX+1}")
    a("s_cmp_eq_u64 vcc, -1")
    a(f"s_cbranch_scc1 {name}_done")
    a("s_cmp_eq_u32 s26, 64")
    a(f"s_cbranch_scc1 {name}_done")
    a("s_mov_b32 s26, 64")
    a("s_mov_b32 s27, -1")
    a("s_mov_b32 s28, -1")
    a("s_mov_b32 s38, -1")
    a(f"v_subrev_u32 v{AK}, {15*10240}, v{AK}")
    a(f"v_subrev_u32 v{AB}, {15*10240}, v{AB}")
    a(f"v_subrev_u32 v{AV}, {15*10240}, v{AV}")
    a(f"s_branch {name}_maxpass")
    a.label(f"{name}_pld")
    for sl in range(4):
        a(f"buffer_load_dwordx4 {vr(PV+4*sl,4)}, v{PO+sl}, s[{48+4*sl}:{51+4*sl}], s{92+sl} offen")
    a(f"s_branch {name}_loop")
    a.label(f"{name}_pst")
    ts(a, 6)
    a("s_waitcnt vmcnt(0)")
    ts(a, 7)
    for sl in range(4):
        a(f"buffer_store_dwordx4 {vr(PV+4*sl,4)}, v{PD}, s[88:91], s30 offen{OPT.get('pk_fl', ' sc1')}")
        if sl < 3: a(f"s_add_u32 s30, s30, {2048*1024}")
    a(f"s_branch {name}_loop")
    a.label(f"{name}_pf")
    a(f"buffer_load_dword v{PV}, v{PF}, s[88:91], s31 offen")
    a(f"buffer_load_dword v{PV+1}, v{PF}, s[88:91], s36 offen")
    a(f"buffer_load_dword v{PV+2}, v{PF}, s[32:35], s37 offen")
    a(f"s_branch {name}_loop")
    a.label(f"{name}_done")
    ts(a, 8)
    a(f"v_rcp_f32 v{MX}, v{MX+1}")
    for k in range(3):
        for i in range(4): a(f"v_mul_f32 v{OO+4*k+i}, v{OO+4*k+i}, v{MX}")
        a(f"v_cvt_pk_bf16_f32 v{PP+2*k}, v{OO+4*k}, v{OO+4*k+1}")
        a(f"v_cvt_pk_bf16_f32 v{PP+2*k+1}, v{OO+4*k+2}, v{OO+4*k+3}")
        if k == 2: a("s_mov_b32 exec_hi, 0")
        a(f"buffer_store_dwordx2 {vr(PP+2*k,2)}, v{SO+k}, s[20:23], 0 offen{OPT.get('a_fl', '')}")
    ts_flush(a, 1)
    a.label(f"{name}_end")
    a("s_endpgm")
    return dict(grid=256, block=512, lds=163840, vgpr=144)

def k_g24(a, name, which):
    g4 = which == 4
    NKS = 54 if g4 else 20
    AKS = ACT_KS if g4 else 20
    NG = (NKS + 3) // 4
    RING = OPT.get('g4_ring', 5) if g4 else 5; DEPTH = OPT.get('g4_depth', 3) if g4 else 4
    NA = OPT.get('g4_na', 8) if g4 else OPT.get('g2_na', 20)
    WB, WF, ACC, RES, AF = 4, 8, 48, 68, 80
    kidx = 4 if g4 else 2
    ts_init(a)
    a(f"""
    s_cmp_ge_u32 s2, 256
    s_cbranch_scc1 {name}_end
    s_load_dwordx2 s[4:5], s[0:1], {48 if g4 else 16}
    s_load_dwordx2 s[6:7], s[0:1], {56 if g4 else 0}
    s_load_dwordx2 s[8:9], s[0:1], 72
    v_lshrrev_b32 v1, 6, v0
    v_and_b32 v0, 63, v0
    v_readfirstlane_b32 s3, v1
    v_readfirstlane_b32 s101, v1
    s_and_b32 s28, s2, 7
    s_lshl_b32 s28, s28, 2
    s_bfe_u32 s29, s2, 0x20003
    s_add_u32 s28, s28, s29
    s_lshr_b32 s29, s2, 5             ; n tile
    s_cmp_ge_u32 s3, 4
    s_cbranch_scc1 {name}_helper
    s_setprio 2
    v_lshlrev_b32 v2, 4, v0
    s_lshl_b32 s30, s28, 2
    s_add_u32 s30, s30, s3
    s_mul_i32 s31, s30, {AKS*1024}
    s_waitcnt lgkmcnt(0)
    """)
    srd(a, 12, 8, WS_ACT if g4 else WS_O, 128 * AKS * 1024)
    vm = []
    def aload(s):
        if s & 3 == 0: a(f"s_add_u32 s32, s31, {s*1024}")
        a(f"buffer_load_dwordx4 {vr(AF+(s%NA)*4,4)}, v2, s[12:15], s32 offen offset:{(s&3)*1024}")
        vm.append(s)
    NPRE, RAMP = (OPT.get("g4_pre", 6), OPT.get("g4_ramp", 2)) if g4 else (OPT.get("g2_pre", 6), OPT.get("g2_ramp", 2))
    for s_ in range(NPRE): aload(s_)
    a("v_and_b32 v1, 15, v0")
    a("v_lshrrev_b32 v3, 4, v0")
    a("v_mul_u32_u24 v78, 1280, v1")
    a("v_lshl_add_u32 v78, v3, 3, v78")
    a("s_mul_i32 s33, s30, 20480")
    a("s_mul_i32 s34, s29, 160")
    a("s_add_u32 s33, s33, s34")
    a("v_lshlrev_b32 v79, 4, v1")
    a("v_lshrrev_b32 v1, 1, v3")
    a("v_lshl_add_u32 v79, v1, 9, v79")
    a("v_and_b32 v1, 1, v3")
    a("v_lshl_add_u32 v79, v1, 3, v79")
    a("s_lshr_b32 s34, s30, 1")
    a("s_mul_i32 s34, s34, 40")
    a("s_mul_i32 s35, s29, 5")
    a("s_add_u32 s34, s34, s35")
    a("s_lshl_b32 s34, s34, 10")
    a("s_and_b32 s35, s30, 1")
    a("s_lshl_b32 s35, s35, 8")
    a("s_add_u32 s34, s34, s35")
    a("s_add_u32 s35, s34, 4096")
    srd(a, 16, 6, 0, SZ_X)
    srd(a, 20, 8, WS_H, SZ_X)
    def rload(b):
        if g4: a(f"buffer_load_dwordx2 {vr(RES+2*b,2)}, v79, s[20:23], s{35 if b == 4 else 34} offen offset:{(b&3)*1024}")
        else:  a(f"buffer_load_dwordx2 {vr(RES+2*b,2)}, v78, s[16:19], s33 offen offset:{b*32}")
        vm.append(f"r{b}")
    a("v_lshrrev_b32 v1, 2, v0")
    a(f"v_mul_u32_u24 v{WB}, 160, v1")
    a("v_and_b32 v1, 3, v0")
    a(f"v_lshl_add_u32 v{WB}, v1, 3, v{WB}")
    a(f"v_add_u32 v{WB+1}, 61440, v{WB}")
    a(f"v_add_u32 v{WB+2}, 122880, v{WB}")
    for i in range(20): a(f"v_mov_b32 v{ACC+i}, 0")
    def wread(s, b, h):
        pos = s % (RING * 4)
        a(f"ds_read_b64_tr_b16 {vr(WF+(s&1)*20+b*4+2*h,2)}, v{WB+pos//12} offset:{(pos%12)*5120+b*32+h*2560}")
    ts(a, 1)
    a("s_barrier")
    ts(a, 2)
    for b in range(5): wread(0, b, 0); wread(0, b, 1)
    issued, nres = NPRE, 0
    for s_ in range(NKS):
        last_in_group = (s_ & 3) == 3 or s_ == NKS - 1
        a(f"s_waitcnt vmcnt({len(vm) - 1 - vm.index(s_)}) lgkmcnt({0 if last_in_group else 8})")
        if last_in_group:
            a("s_barrier")
            if PROF and s_ in ((3, 7, 11, 15, 19) if not g4 else (3, 15, 27, 39, 53)): ts(a, 3 + (s_ // (12 if g4 else 4)))
        for b in range(5):
            if b and not last_in_group: a(f"s_waitcnt lgkmcnt(8)")
            a(f"v_mfma_f32_16x16x32_bf16 {vr(ACC+4*b,4)}, {vr(WF+(s_&1)*20+b*4,4)}, {vr(AF+(s_%NA)*4,4)}, {vr(ACC+4*b,4)}")
            if s_ + 1 < NKS: wread(s_ + 1, b, 0); wread(s_ + 1, b, 1)
            if b < RAMP:
                if issued < NKS:
                    if issued < s_ + NA: aload(issued); issued += 1
                elif nres < 5: rload(nres); nres += 1
    assert nres == 5
    a("s_waitcnt vmcnt(0)")
    ts(a, 8)
    a("s_mov_b32 s39, 0xffff0000")
    if not g4:
        for i in range(4): a(f"v_mov_b32 v{8+i}, 0")
    for b in range(5):
        r, x, t = ACC + 4 * b, RES + 2 * b, 12 + (b & 1) * 4
        for h in range(2):
            a(f"v_lshlrev_b32 v{t+2*h}, 16, v{x+h}")
            a(f"v_and_b32 v{t+2*h+1}, s39, v{x+h}")
        for h in range(2):
            a(f"v_pk_add_f32 {vr(r+2*h,2)}, {vr(r+2*h,2)}, {vr(t+2*h,2)}")
        for h in range(2):
            a(f"v_cvt_pk_bf16_f32 v{x+h}, v{r+2*h}, v{r+2*h+1}")
        if g4:
            a(f"buffer_store_dwordx2 {vr(x,2)}, v78, s[16:19], s33 offen offset:{b*32}{OPT.get('g4_fl', '')}")
        else:
            a(f"buffer_store_dwordx2 {vr(x,2)}, v79, s[20:23], s{35 if b == 4 else 34} offen offset:{(b&3)*1024}{OPT.get('g2_fl', '')}")
            for h in range(2):
                a(f"v_lshlrev_b32 v{t+2*h}, 16, v{x+h}")
                a(f"v_and_b32 v{t+2*h+1}, s39, v{x+h}")
            for h in range(2):
                a(f"v_pk_add_f32 v[8:9], v[8:9], {vr(t+2*h,2)}")
                a(f"v_pk_fma_f32 v[10:11], {vr(t+2*h,2)}, {vr(t+2*h,2)}, v[10:11]")
    if not g4:
        a("v_add_f32 v8, v8, v9")
        a("v_add_f32 v9, v10, v11")
        for wh in (16, 32):
            a("v_mov_b32 v10, v8")
            a("v_mov_b32 v11, v9")
            a(f"v_permlane{wh}_swap_b32 v8, v10")
            a(f"v_permlane{wh}_swap_b32 v9, v11")
            a("v_pk_add_f32 v[8:9], v[8:9], v[10:11]")
        srd(a, 24, 8, WS_ST, 8 * S * 8)
        a("s_lshl_b32 s36, s29, 14")
        a("s_lshl_b32 s37, s30, 7")
        a("s_add_u32 s36, s36, s37")
        a("v_lshlrev_b32 v1, 3, v0")
        a("s_mov_b64 exec, 0xffff")
        a("buffer_store_dwordx2 v[8:9], v1, s[24:27], s36 offen")
    ts_flush(a, kidx)
    a("s_endpgm")
    a.label(f"{name}_helper")
    if OPT.get("hprio", 0): a(f"s_setprio {OPT['hprio']}")
    a("s_sub_u32 s3, s3, 4")
    a("v_lshlrev_b32 v2, 4, v0")
    a(f"s_mul_i32 s30, s29, {NKS*5120}")
    a("s_mul_i32 s31, s3, 5120")
    a("s_add_u32 s30, s30, s31")
    a("s_waitcnt lgkmcnt(0)")
    ts(a, 1)
    srd(a, 12, 8, WS_WDP if g4 else WS_WOP, 8 * NKS * 5120)
    def gissue(g):
        a(f"s_add_u32 s32, s30, {g*20480}")
        a(f"s_add_u32 m0, s31, {(g%RING)*20480}")
        for p_ in range(4):
            a(f"buffer_load_dwordx4 v2, s[12:15], s32 offen offset:{p_*1024} lds")
        a(f"s_add_u32 s32, s32, 4096")
        a(f"s_add_u32 m0, m0, 4096")
        a(f"buffer_load_dwordx4 v2, s[12:15], s32 offen lds")
    gissue(0); gissue(1)
    ts(a, 2)
    a("s_waitcnt vmcnt(5)")
    ts(a, 3)
    a("s_barrier")
    ts(a, 4)
    nxt = 2
    for g in range(NG):
        lim = min(NG, g + RING)
        while nxt < lim and nxt <= g + DEPTH:
            gissue(nxt); nxt += 1
        if g + 1 < NG: a(f"s_waitcnt vmcnt({min(63, 5*(nxt-1-(g+1)))})")
        a("s_barrier")
    ts_flush(a, kidx)
    a.label(f"{name}_end")
    a("s_endpgm")
    return dict(grid=256, block=512, lds=RING * 20480, vgpr=AF + NA * 4)

def k_g3(a, name):
    STG = 28672 + 256
    UPO = 14336 + 128
    RING, DEPTH, NA = 5, 3, 16
    XG = OPT.get("g3_xg", 7)
    LCS = RING * STG
    WB, WF, ACC, AF = 4, 8, 64, 176
    ts_init(a)
    a(f"""
    s_cmp_ge_u32 s2, 256
    s_cbranch_scc1 {name}_end
    s_load_dwordx4 s[4:7], s[0:1], 32
    s_load_dwordx2 s[8:9], s[0:1], 72
    v_lshrrev_b32 v1, 6, v0
    v_and_b32 v0, 63, v0
    v_readfirstlane_b32 s3, v1
    v_readfirstlane_b32 s101, v1
    s_bfe_u32 s28, s2, {'0x20001' if OPT.get('g3map', 1) else '0x20000'}
    s_lshl_b32 s28, s28, 2
    s_bfe_u32 s29, s2, 0x20003
    s_add_u32 s28, s28, s29
    s_bfe_u32 s29, s2, {'0x10000' if OPT.get('g3map', 1) else '0x10002'}
    s_lshl_b32 s29, s29, 3
    s_lshr_b32 s30, s2, 5
    s_add_u32 s29, s29, s30
    s_cmp_ge_u32 s3, 4
    s_cbranch_scc1 {name}_helper
    s_setprio 2
    v_lshlrev_b32 v2, 4, v0
    s_lshl_b32 s30, s28, 2
    s_add_u32 s30, s30, s3
    s_mul_i32 s31, s30, 40960
    s_waitcnt lgkmcnt(0)
    """)
    srd(a, 12, 8, WS_H, SZ_X)
    vm = []
    def aload(s):
        if s & 3 == 0: a(f"s_add_u32 s32, s31, {s*1024}")
        a(f"buffer_load_dwordx4 {vr(AF+(s%NA)*4,4)}, v2, s[12:15], s32 offen offset:{(s&3)*1024}")
        vm.append(s)
    NPRE, RAMP = OPT.get("g3_pre", 6), OPT.get("g3_ramp", 3)
    for s_ in range(NPRE): aload(s_)
    srd(a, 16, 8, WS_ST, 8 * S * 8)
    a("v_and_b32 v1, 31, v0")
    a("v_lshrrev_b32 v3, 5, v0")
    a("v_lshlrev_b32 v241, 3, v1")
    a("v_lshl_add_u32 v241, v3, 16, v241")
    a("s_lshl_b32 s33, s30, 8")
    def sload(i):
        a(f"buffer_load_dwordx2 {vr(242+2*i,2)}, v241, s[16:19], s33 offen")
        if i < 3: a("s_add_u32 s33, s33, 16384")
        vm.append(f"s{i}")
    a("v_bfe_u32 v240, v0, 2, 2")
    a("v_lshl_add_u32 v240, v3, 3, v240")
    a(f"v_mul_u32_u24 v{WB}, 224, v240")
    a("v_bfe_u32 v240, v0, 4, 1")
    a(f"v_mul_u32_u24 v240, {UPO}, v240")
    a(f"v_add_u32 v{WB}, v{WB}, v240")
    a("v_and_b32 v240, 3, v0")
    a(f"v_lshl_add_u32 v{WB}, v240, 3, v{WB}")
    a(f"v_add_u32 v{WB+1}, {2*STG}, v{WB}")
    a(f"v_add_u32 v{WB+2}, {4*STG}, v{WB}")
    for i in range(112): a(f"v_mov_b32 v{ACC+i}, 0")
    srd(a, 20, 8, WS_ACT, 128 * ACT_KS * 1024)
    a("v_bfe_u32 v240, v0, 4, 1")
    a(f"v_mul_u32_u24 v250, {ACT_KS*1024}, v240")
    a("v_and_b32 v240, 15, v0")
    a("v_lshl_add_u32 v250, v240, 4, v250")
    a("v_lshl_add_u32 v250, v3, 8, v250")
    a(f"s_mul_i32 s34, s30, {2*ACT_KS*1024}")
    a("s_mul_i32 s35, s29, 7")
    a("s_lshr_b32 s35, s35, 1")
    a("s_lshl_b32 s35, s35, 10")
    a("s_add_u32 s34, s34, s35")
    def wread(s, b, h):
        st = (s >> 2) % RING
        a(f"ds_read_b64_tr_b16 {vr(WF+(s&1)*28+b*4+2*h,2)}, v{WB+st//2} offset:{(st&1)*STG+(s&3)*3584+b*32+h*896}")
    ts(a, 1)
    a("s_barrier")
    ts(a, 2)
    for b in range(7): wread(0, b, 0); wread(0, b, 1)
    issued = NPRE
    for s_ in range(40):
        lig = (s_ & 3) == 3
        a(f"s_waitcnt vmcnt({len(vm) - 1 - vm.index(s_)}) lgkmcnt(12)")
        for b in range(7):
            if lig and b == 3:
                a("s_waitcnt lgkmcnt(0)")
                if (s_ >> 2) <= XG: a("s_barrier")
                if PROF and s_ in (3, 11, 19, 27, 39): ts(a, 3 + min(4, s_ // 8))
            elif b and not (lig and b > 3):
                a(f"s_waitcnt lgkmcnt({12 - 2*b if lig else 12})")
            a(f"v_mfma_f32_32x32x16_bf16 {vr(ACC+16*b,16)}, {vr(WF+(s_&1)*28+b*4,4)}, {vr(AF+(s_%NA)*4,4)}, {vr(ACC+16*b,16)}")
            if s_ + 1 < 40:
                if not lig: wread(s_ + 1, b, 0); wread(s_ + 1, b, 1)
                elif b >= 3:
                    for bb in {3: (0, 1), 4: (2, 3), 5: (4, 5), 6: (6,)}[b]: wread(s_ + 1, bb, 0); wread(s_ + 1, bb, 1)
            if b in (1, 4, 6)[:RAMP] and issued < min(40, s_ + NA):
                aload(issued); issued += 1
            if s_ == 12 and b in (2, 3, 4, 5): sload(b - 2)
        if s_ == 30:
            for i in (244, 246, 248):
                a(f"v_add_f32 v242, v242, v{i}")
                a(f"v_add_f32 v243, v243, v{i+1}")
            swap_sum(a, 242, 244, 32)
            swap_sum(a, 243, 244, 32)
            ln_stats(a, 242, 243, 244)
            a("v_mul_f32 v243, v243, v243")
    ts(a, 8)
    a("v_lshlrev_b32 v1, 4, v3")
    a(f"v_add_u32 v1, {LCS}, v1")
    def csread(b):
        d = 8 + (b % 3) * 16
        for u in range(2):
            for q in range(2):
                a(f"ds_read_b128 {vr(d+u*8+q*4,4)}, v1 offset:{u*448+b*64+q*32}")
    def blk(b):
        d = 8 + (b % 3) * 16
        r = ACC + 16 * b
        for i in range(0, 16, 2):
            a(f"v_pk_fma_f32 {vr(r+i,2)}, {vr(d+i,2)}, v[242:243], {vr(r+i,2)} op_sel_hi:[1,0,1]")
        for i in range(8): a(f"v_max_f32 v{r+i}, 0, v{r+i}")
        for i in range(0, 8, 2):
            a(f"v_pk_mul_f32 {vr(r+8+i,2)}, {vr(r+8+i,2)}, v[242:243] op_sel:[0,1] op_sel_hi:[1,1]")
        for i in range(0, 8, 2):
            a(f"v_pk_mul_f32 {vr(r+i,2)}, {vr(r+i,2)}, {vr(r+8+i,2)}")
    def body(odd):
        csread(0); csread(1)
        for b in range(7):
            if b + 2 < 7: csread(b + 2)
            a(f"s_waitcnt lgkmcnt({4*min(2, 6-b)})")
            blk(b)
            r = ACC + 16 * b
            B = b + odd
            o = 176 + (B >> 1) * 8
            for q in range(2):
                for i in range(2):
                    a(f"v_cvt_pk_bf16_f32 v{o+q*4+(B&1)*2+i}, v{r+q*4+2*i}, v{r+q*4+2*i+1}")
            for q in range(2):
                off = (B >> 1) * 1024 + q * 512
                if B & 1 and b > 0:
                    a(f"buffer_store_dwordx4 {vr(o+q*4,4)}, v250, s[20:23], s34 offen offset:{off}{OPT.get('g3_fl', '')}")
                elif B & 1:
                    a(f"buffer_store_dwordx2 {vr(o+q*4+2,2)}, v250, s[20:23], s34 offen offset:{off+8}{OPT.get('g3_fl', '')}")
                elif b == 6:
                    a(f"buffer_store_dwordx2 {vr(o+q*4,2)}, v250, s[20:23], s34 offen offset:{off}{OPT.get('g3_fl', '')}")
    a("s_bitcmp1_b32 s29, 0")
    a(f"s_cbranch_scc1 {name}_odd")
    body(0)
    ts_flush(a, 3)
    a("s_endpgm")
    a.label(f"{name}_odd")
    body(1)
    ts_flush(a, 3)
    a("s_endpgm")
    a.label(f"{name}_helper")
    if OPT.get("hprio", 0): a(f"s_setprio {OPT['hprio']}")
    a("s_sub_u32 s3, s3, 4")
    a("v_lshlrev_b32 v8, 4, v0")
    a("s_and_b32 s32, s3, 1")
    a("s_mul_i32 s31, s32, 7168")
    a(f"s_mul_i32 s30, s29, {640*224}")
    a("s_add_u32 s30, s30, s31")
    a("s_cmp_ge_u32 s3, 2")
    a(f"s_cselect_b32 s33, {UPO}, 0")
    a("s_add_u32 s31, s31, s33")
    a("s_cmp_ge_u32 s3, 2")
    a(f"s_cselect_b32 s33, {16*640*224}, 0")
    a("s_add_u32 s30, s30, s33")
    a("s_waitcnt lgkmcnt(0)")
    ts(a, 1)
    srd(a, 12, 8, WS_WGP, 32 * 640 * 224)
    def gissue(g):
        a(f"s_add_u32 s32, s30, {g*14336}")
        a(f"s_add_u32 m0, s31, {(g%RING)*STG}")
        for p_ in range(7):
            if p_ == 4:
                a(f"s_add_u32 s32, s32, 4096")
                a(f"s_add_u32 m0, m0, 4096")
            a(f"buffer_load_dwordx4 v8, s[12:15], s32 offen offset:{(p_&3)*1024} lds")
    gissue(0)
    gissue(1)
    ts(a, 2)
    srd(a, 16, 8, WS_CS, 32 * CS_UP)
    a("s_mul_i32 s34, s29, 448")
    a("s_and_b32 s35, s3, 1")
    a("s_mul_i32 s35, s35, 224")
    a("s_add_u32 s34, s34, s35")
    a("s_cmp_ge_u32 s3, 2")
    a(f"s_cselect_b32 s36, {CS_UP}, 0")
    a("s_add_u32 s34, s34, s36")
    a("v_lshlrev_b32 v2, 2, v0")
    a("s_mul_i32 s35, s3, 224")
    a(f"s_add_u32 s35, s35, {LCS}")
    a("v_add_u32 v3, s35, v2")
    a("s_waitcnt vmcnt(7)")
    ts(a, 3)
    a("s_barrier")
    ts(a, 4)
    nxt = 2
    srd(a, 20, 8, WS_WDP, 2160 * 1024)
    a("v_lshlrev_b32 v9, 7, v0")
    a("s_lshr_b32 s36, s2, 3")
    a("s_lshl_b32 s36, s36, 2")
    a("s_add_u32 s36, s36, s3")
    a("s_lshl_b32 s36, s36, 13")
    hv = ["g0"] * 7 + ["g1"] * 7
    for g in range(XG + 1):
        lim = min(10, g + RING)
        while nxt < lim and (nxt <= g + DEPTH or g + 1 >= XG):
            gissue(nxt); hv += [f"g{nxt}"] * 7; nxt += 1
        if g == OPT.get("g3_csg", 5):
            for i in range(16):
                a(f"buffer_load_dword v{16+i}, v2, s[16:19], s34 offen")
                if i < 15: a(f"s_add_u32 s34, s34, {2*CS_UP}")
            hv += ["cs"] * 16
        a(f"s_waitcnt vmcnt({hv[::-1].index(f'g{g+1}') if g < XG else 0})")
        if g == XG:
            for w_ in (8, 4, 2, 1):
                for i in range(w_): a(f"v_add_f32 v{16+i}, v{16+i}, v{16+w_+i}")
            a("s_mov_b32 exec_hi, 0xffffff")
            a("ds_write_b32 v3, v16")
            a("s_mov_b32 exec_hi, -1")
            a("s_waitcnt lgkmcnt(0)")
        a("s_barrier")
    assert nxt == 10
    for i in range(OPT.get("g3_npf", 0)):
        a(f"buffer_load_dword v{40+i}, v9, s[20:23], s36 offen")
        a(f"s_add_u32 s36, s36, {128*8192}")
    ts_flush(a, 3)
    a.label(f"{name}_end")
    a("s_endpgm")
    return dict(grid=256, block=512, lds=LCS + 1024, vgpr=256)

def k_spin(a, name):
    a(f"""
    s_cmp_ge_u32 s2, 1
    s_cbranch_scc1 {name}_end
    s_load_dwordx2 s[8:9], s[0:1], 72
    s_waitcnt lgkmcnt(0)
    s_add_u32 s8, s8, {hex(WS_PROF)}
    s_addc_u32 s9, s9, 0
    s_load_dword s10, s[8:9], 0
    s_waitcnt lgkmcnt(0)
    {name}_loop:
    s_memrealtime s[12:13]
    s_waitcnt lgkmcnt(0)
    s_sub_u32 s12, s12, s10
    s_cmp_lt_u32 s12, 10000
    s_cbranch_scc1 {name}_loop
    {name}_end:
    s_endpgm
    """)
    return dict(grid=1, block=64, lds=0, vgpr=8)

KERNELS = [("k_qkv_kernel", k_qkv), ("k_attn_kernel", k_attn), ("k_g2_kernel", lambda a, n: k_g24(a, n, 2)),
           ("k_g3_kernel", k_g3), ("k_g4_kernel", lambda a, n: k_g24(a, n, 4))]

HEADER = open("sequential_preLN__mha_block__glu_gated_reglu__prompt.s.ref").read().split("; Override")[0]

def build(kernels=None, report=False):
    kernels = kernels or KERNELS
    launch, body, desc = "", "", '.section .rodata,"a"\n'
    for name, fn in kernels:
        a = Asm()
        cfg = fn(a, name)
        rep = []
        a.fix(rep)
        if report:
            print(name, "instrs", len(a.items), "nops inserted", len(rep), sum(r[1] for r in rep))
        launch += f"; @launch kernel={name} grid=({cfg['grid']},1,1) block=({cfg['block']},1,1) lds={cfg['lds']}\n"
        body += f".globl {name}\n.p2align 8\n.type {name},@function\n{name}:\n" + a.text()
        v = (cfg["vgpr"] + 7) // 8 * 8
        desc += f""".p2align 6
.amdhsa_kernel {name}
  .amdhsa_next_free_vgpr {v}
  .amdhsa_next_free_sgpr 102
  .amdhsa_accum_offset {v}
  .amdhsa_group_segment_fixed_size 0
  .amdhsa_kernarg_size 80
  .amdhsa_user_sgpr_count 2
  .amdhsa_user_sgpr_kernarg_segment_ptr 1
  .amdhsa_system_sgpr_workgroup_id_x 1
.end_amdhsa_kernel
"""
    return HEADER + launch + '.amdgcn_target "amdgcn-amd-amdhsa--gfx950"\n.text\n' + body + "code_end:\n" + desc

if __name__ == "__main__":
    out = sys.argv[1] if len(sys.argv) > 1 else "sequential_preLN__mha_block__glu_gated_reglu__prompt.s"
    for kv in sys.argv[3:]:
        k_, v_ = kv.split("=")
        try: OPT[k_] = int(v_)
        except ValueError: OPT[k_] = v_.replace("+", " ")
    if len(sys.argv) > 2 and sys.argv[2] == "prof": PROF = True
    if len(sys.argv) > 2 and sys.argv[2] == "dbg": DBG = True
    if len(sys.argv) > 2 and sys.argv[2] == "spin":
        DBG = True
        for j in range(1, len(KERNELS) + 1):
            open(out.replace(".s", f"{j}.s"), "w").write(build(KERNELS[:j] + [("k_spin_kernel", k_spin)] + KERNELS[j:]))
        sys.exit(0)
    open(out, "w").write(build(report=True))
```
